```python
import torch

def _softmax(x, axis=-1):
    return torch.softmax(x, dim=axis)
def _gelu(x):
    return torch.nn.functional.gelu(x, approximate="tanh")
def _silu(x):
    return torch.nn.functional.silu(x)
def _sigmoid(x):
    return torch.sigmoid(x)
def _layernorm(x, axis=-1, eps=1e-5):
    m = x.mean(dim=axis, keepdim=True)
    v = x.var(dim=axis, keepdim=True, unbiased=False)
    return (x - m) / torch.sqrt(v + eps)
def _scatter_add(tgt, idx, src, axis=0):
    return tgt.clone().index_add_(axis, idx, src)
def _segment_sum(src, seg, n):
    out = torch.zeros((n,) + src.shape[1:], dtype=src.dtype)
    return out.index_add_(0, seg, src)
def _pad(x, pw):
    flat = tuple(v for pair in reversed(pw) for v in pair)
    return torch.nn.functional.pad(x, flat)

kernel_name = 'standalone__mha_block_cached__near_ridge'

def setup_inputs():

    _w = (lambda a: (lambda t: t.to(torch.bfloat16) if t.is_floating_point() else t)(torch.as_tensor(a)))
    B, Sq, D = 8, 192, 448
    H, Sk, Dh = 16, 1024, 256
    return {
        "x": _w((lambda *s: torch.randn(*s, dtype=torch.bfloat16) * 0.8)(B, Sq, D)),
        "k_cache": _w((lambda *s: torch.randn(*s, dtype=torch.bfloat16) * 0.8)(B, H, Sk, Dh)),
        "v_cache": _w((lambda *s: torch.randn(*s, dtype=torch.bfloat16) * 0.05)(B, H, Sk, Dh)),
        "wq": _w((lambda *s: torch.randn(*s, dtype=torch.bfloat16) * 0.8)(D, H * Dh) * (D ** -0.5)),
        "wo": _w((lambda *s: torch.randn(*s, dtype=torch.bfloat16) * 0.05)(H * Dh, D) * ((H * Dh) ** -0.5)),
    }

def reference(x, k_cache, v_cache, wq, wo):
    B, Sq, D = x.shape
    H, Dh = 16, 256
    q = (lambda x, *d: x.permute(*d))((x @ wq).reshape(B, Sq, H, Dh), 0, 2, 1, 3)
    scores = torch.einsum("bhqd,bhkd->bhqk", q, k_cache) * (Dh ** -0.5)
    p = _softmax(scores, axis=-1)
    o = torch.einsum("bhqk,bhkd->bhqd", p, v_cache)
    return (lambda x, *d: x.permute(*d))(o, 0, 2, 1, 3).reshape(B, Sq, H * Dh) @ wo
```

```python
def regs(cls, base, n=1):
    return [f"{cls}{base+i}" for i in range(n)]

def rtxt(cls, base, n=1):
    if n == 1:
        return f"{cls}{base}"
    return f"{cls}[{base}:{base+n-1}]"

class R:
    def __init__(self, cls, base, n=1):
        self.cls, self.base, self.n = cls, base, n
    def __str__(self):
        return rtxt(self.cls, self.base, self.n)
    def regs(self):
        return regs(self.cls, self.base, self.n)
    def sub(self, off, n=1):
        assert off + n <= self.n
        return R(self.cls, self.base + off, n)
    def __getitem__(self, i):
        return self.sub(i, 1)

def V(b, n=1): return R('v', b, n)
def A(b, n=1): return R('a', b, n)
def S(b, n=1): return R('s', b, n)

def _opregs(x):
    if isinstance(x, R):
        return x.regs()
    if isinstance(x, str):
        t = x.lstrip('-')
        if t in ('vcc', 'm0', 'exec', 'scc'):
            return [t]
    return []

TRANS = ('v_exp_f32', 'v_log_f32', 'v_rcp_f32', 'v_rsq_f32', 'v_sqrt_f32')

class Gen:
    def __init__(self):
        self.lines = []
        self.slot = 0
        self.hist = []
        self.lgkm = []
        self.vm = []
        self.auto = True
        self.nlabel = 0

    def raw(self, text, count=1):
        self.lines.append("    " + text)
        self.slot += count

    def comment(self, t):
        self.lines.append("    ; " + t)

    def nop(self, n):
        while n > 0:
            k = min(n, 16)
            self.raw(f"s_nop {k-1}", k)
            n -= k

    def fence(self):
        self.hist = []
        self.lgkm = []
        self.vm = []

    def label(self, name):
        self.lines.append(f"{name}:")
        self.fence()

    def newlabel(self, p="L"):
        self.nlabel += 1
        return f"{p}_{self.nlabel}"

    def wait(self, vm=None, lgkm=None):
        parts = []
        if vm is not None:
            vm = min(vm, 63)
            parts.append(f"vmcnt({vm})")
            if len(self.vm) > vm:
                self.vm = self.vm[len(self.vm) - vm:] if vm > 0 else []
        if lgkm is not None:
            lgkm = min(lgkm, 15)
            parts.append(f"lgkmcnt({lgkm})")
            if len(self.lgkm) > lgkm:
                self.lgkm = self.lgkm[len(self.lgkm) - lgkm:] if lgkm > 0 else []
        self.raw("s_waitcnt " + " ".join(parts))

    def _autowait(self, touched):
        touched = set(touched)
        need_l = None
        for i, d in enumerate(self.lgkm):
            if d & touched:
                need_l = len(self.lgkm) - 1 - i
        need_v = None
        for i, d in enumerate(self.vm):
            if d & touched:
                need_v = len(self.vm) - 1 - i
        if need_l is not None or need_v is not None:
            self.wait(vm=need_v, lgkm=need_l)

    def _hazard(self, kind, reads, writes, extra):
        reads, writes = set(reads), set(writes)
        need = 0
        for (p, pk, pr, pw, px) in self.hist:
            dist = self.slot - p - 1
            req = 0
            if pk in ('valu', 'trans'):
                if kind == 'mfma' and (pw & reads):
                    req = max(req, 2)
                if pk == 'trans' and kind == 'valu' and (pw & reads):
                    req = max(req, 1)
                if kind == 'perm' and (pw & reads):
                    req = max(req, 2)
                if kind == 'rdlane' and (pw & reads):
                    req = max(req, 1)
                sw = {r for r in pw if r[0] == 's' or r == 'vcc'}
                if sw & reads:
                    if kind in ('valu', 'trans', 'perm', 'rdlane'):
                        req = max(req, 2)
                    if kind in ('vmem',):
                        req = max(req, 5)
                    if kind in ('salu', 'branch'):
                        req = max(req, 4)
            if pk in ('perm', 'rdlane'):
                if kind == 'mfma' and (pw & reads):
                    req = max(req, 2)
                if kind == 'perm' and (pw & reads):
                    req = max(req, 2)
                sw = {r for r in pw if r[0] == 's' or r == 'vcc'}
                if sw & reads:
                    if kind in ('valu', 'trans', 'perm', 'rdlane'):
                        req = max(req, 2)
                    if kind in ('vmem',):
                        req = max(req, 5)
                    if kind in ('salu', 'branch'):
                        req = max(req, 4)
            if pk == 'mfma':
                passes = px['passes']
                if kind == 'mfma':
                    c = set(extra['c'])
                    ab = set(extra['ab'])
                    if pw & ab:
                        req = max(req, passes + 4)
                    if pw & c:
                        if c == pw and extra['passes'] == passes:
                            pass
                        else:
                            req = max(req, passes + 2)
                    elif pw & writes:
                        req = max(req, passes + 2)
                else:
                    if pw & (reads | writes):
                        req = max(req, passes + 4)
                    if kind in ('valu', 'trans', 'perm', 'rdlane') and (set(px['c']) & writes):
                        req = max(req, passes - 1)
            if pk == 'salu':
                if 'm0' in pw and extra.get('dma'):
                    req = max(req, 1)
            if pk == 'vmem' and px.get('wide_store'):
                if set(px['data']) & writes:
                    req = max(req, 2)
            if req > dist:
                need = max(need, req - dist)
        if need:
            self.nop(need)

    def ins(self, text, kind, reads=(), writes=(), extra=None):
        extra = extra or {}
        reads = [r for x in reads for r in _opregs(x)]
        writes = [r for x in writes for r in _opregs(x)]
        if self.auto:
            self._autowait(reads + writes)
            self._hazard(kind, reads, writes, extra)
        self.hist.append((self.slot, kind, set(reads), set(writes), extra))
        self.hist = [h for h in self.hist if self.slot - h[0] < 40]
        self.raw(text)
        return reads, writes

    def valu(self, op, dst, *srcs, mods=""):
        kind = 'trans' if op in TRANS else 'valu'
        txt = f"{op} {dst}, " + ", ".join(str(s) for s in srcs) + (" " + mods if mods else "")
        rd = list(srcs)
        if op in ('v_fmac_f32',):
            rd.append(dst)
        if op.startswith('v_cndmask') and len(srcs) == 2:
            rd.append('vcc')
        self.ins(txt, kind, reads=rd, writes=[dst])

    def vcmp(self, op, dst, a, b):
        self.ins(f"{op} {dst}, {a}, {b}", 'valu', reads=[a, b], writes=[dst])

    def salu(self, op, dst, *srcs):
        txt = f"{op} {dst}" + (", " if srcs else "") + ", ".join(str(s) for s in srcs)
        self.ins(txt, 'salu', reads=list(srcs), writes=[dst, 'scc'])

    def scmp(self, op, a, b):
        self.ins(f"{op} {a}, {b}", 'salu', reads=[a, b], writes=['scc'])

    def branch(self, op, label):
        rd = []
        if 'vcc' in op: rd = ['vcc']
        self.ins(f"{op} {label}", 'branch', reads=rd)

    def mfma32(self, d, a, b, c):
        cr = c.regs() if isinstance(c, R) else []
        self.ins(f"v_mfma_f32_32x32x16_bf16 {d}, {a}, {b}, {c}", 'mfma',
                 reads=[a, b] + ([c] if isinstance(c, R) else []), writes=[d],
                 extra={'passes': 8, 'c': cr, 'ab': a.regs() + b.regs()})

    def mfma16(self, d, a, b, c):
        cr = c.regs() if isinstance(c, R) else []
        self.ins(f"v_mfma_f32_16x16x32_bf16 {d}, {a}, {b}, {c}", 'mfma',
                 reads=[a, b] + ([c] if isinstance(c, R) else []), writes=[d],
                 extra={'passes': 4, 'c': cr, 'ab': a.regs() + b.regs()})

    def ds_read(self, op, dst, addr, offset=0):
        assert 0 <= offset < 65536, offset
        self.ins(f"{op} {dst}, {addr} offset:{offset}", 'ds', reads=[addr], writes=[dst])
        self.lgkm.append(set(dst.regs()))

    def ds_write(self, op, addr, data, offset=0):
        assert 0 <= offset < 65536
        self.ins(f"{op} {addr}, {data} offset:{offset}", 'ds', reads=[addr, data])
        self.lgkm.append(set())

    def buf_load(self, op, dst, voff, srd, soff=0, offset=0, flags=""):
        assert 0 <= offset < 4096
        self.ins(f"{op} {dst}, {voff}, {srd}, {soff} offen offset:{offset}{flags}", 'vmem',
                 reads=[voff, srd, soff], writes=[dst])
        self.vm.append(set(dst.regs()))

    def buf_dma(self, voff, srd, soff=0, offset=0, flags="", tag=None):
        assert 0 <= offset < 4096
        self.ins(f"buffer_load_dwordx4 {voff}, {srd}, {soff} offen offset:{offset}{flags} lds", 'vmem',
                 reads=[voff, srd, soff, 'm0'], extra={'dma': True})
        self.vm.append({tag} if tag else set())

    def buf_store(self, op, data, voff, srd, soff=0, offset=0, flags=""):
        assert 0 <= offset < 4096
        self.ins(f"{op} {data}, {voff}, {srd}, {soff} offen offset:{offset}{flags}", 'vmem',
                 reads=[data, voff, srd, soff],
                 extra={'wide_store': data.n >= 3, 'data': data.regs()})
        self.vm.append(set())

    def perm32swap(self, a, b):
        self.ins(f"v_permlane32_swap_b32 {a}, {b}", 'perm', reads=[a, b], writes=[a, b])

    def readfirstlane(self, sdst, v):
        self.ins(f"v_readfirstlane_b32 {sdst}, {v}", 'rdlane', reads=[v], writes=[sdst])

    def accw(self, adst, v):
        self.ins(f"v_accvgpr_write_b32 {adst}, {v}", 'valu', reads=[v], writes=[adst])

    def accr(self, vdst, a):
        self.ins(f"v_accvgpr_read_b32 {vdst}, {a}", 'valu', reads=[a], writes=[vdst])

    def barrier(self):
        self.raw("s_barrier")

    def text(self):
        return "\n".join(self.lines) + "\n"
```

```python
import sys, math
sys.path.insert(0, 'gen')
from asmgen import *

HEADER = """; Kernarg layout for this problem (64 bytes, ptrs only, base s[0:1]):
"""

def kd(name, vgpr, acc_off, sgpr=102):
    return f""".section .rodata,"a"
.p2align 6
.amdhsa_kernel {name}
  .amdhsa_next_free_vgpr {vgpr}
  .amdhsa_next_free_sgpr {sgpr}
  .amdhsa_accum_offset {acc_off}
  .amdhsa_group_segment_fixed_size 0
  .amdhsa_kernarg_size 64
  .amdhsa_user_sgpr_count 2
  .amdhsa_user_sgpr_kernarg_segment_ptr 1
  .amdhsa_system_sgpr_workgroup_id_x 1
.end_amdhsa_kernel
.text
"""

def kernel_head(g, name):
    g.lines.append(f".globl {name}")
    g.lines.append(".p2align 8")
    g.lines.append(f".type {name},@function")
    g.lines.append(f"{name}:")
    g.fence()

def make_srd(g, srd, ptr, nbytes, add_lo=None):
    if add_lo is None:
        g.salu('s_mov_b32', srd[0], ptr[0])
        g.salu('s_mov_b32', srd[1], ptr[1])
    else:
        g.salu('s_add_u32', srd[0], ptr[0], add_lo)
        g.salu('s_addc_u32', srd[1], ptr[1], 0)
    g.salu('s_mov_b32', srd[2], hex(nbytes))
    g.salu('s_mov_b32', srd[3], '0x00020000')

def perm_chunk_valu(g, dst, cm, tmp):
    g.valu('v_and_b32', dst, 4, cm)
    g.valu('v_and_b32', tmp, 1, cm)
    g.valu('v_lshlrev_b32', tmp, 1, tmp)
    g.valu('v_or_b32', dst, dst, tmp)
    g.valu('v_lshrrev_b32', tmp, 1, cm)
    g.valu('v_and_b32', tmp, 1, tmp)
    g.valu('v_or_b32', dst, dst, tmp)

NT = 32
NW = 14
KRING = 0
VRING = 65536
TILE = 16384

def interleave(g, mf, fill):
    n = len(mf)
    k = 0
    for i, m in enumerate(mf):
        m()
        upto = (len(fill) * (i + 1)) // n
        while k < upto:
            fill[k]()
            k += 1

def gen_attn(g):
    name = 'attn_kernel'
    kernel_head(g, name)
    P = lambda i: S(4 + 2 * i, 2)
    srdK, srdV, srdW, srdX, srdO = S(20, 4), S(24, 4), S(28, 4), S(32, 4), S(36, 4)
    s_bh, s_half, s_b, s_h, s_wave = S(40), S(41), S(42), S(43), S(44)
    st0, st1 = S(45), S(46)
    s_c = S(50)
    Lend = 'attn_end'
    g.scmp('s_cmp_ge_u32', S(2), 256)
    g.branch('s_cbranch_scc1', Lend)
    g.raw("s_load_dwordx16 s[4:19], s[0:1], 0")
    g.salu('s_lshr_b32', st0, S(2), 4)
    g.salu('s_lshl_b32', st0, st0, 3)
    g.salu('s_and_b32', st1, S(2), 7)
    g.salu('s_add_u32', s_bh, st0, st1)
    g.salu('s_lshr_b32', st0, S(2), 3)
    g.salu('s_and_b32', s_half, st0, 1)
    g.salu('s_lshr_b32', s_b, s_bh, 4)
    g.salu('s_and_b32', s_h, s_bh, 15)
    g.valu('v_lshrrev_b32', V(1), 6, V(0))
    g.readfirstlane(s_wave, V(1))
    g.salu('s_mov_b32', s_c, hex(0x3db8aa3b))
    import struct
    cval = struct.unpack('<I', struct.pack('<f', math.log2(math.e) / 16.0))[0]
    g.lines[-1] = f"    s_mov_b32 s50, {hex(cval)}"
    g.wait(lgkm=0)
    g.salu('s_lshl_b32', st0, s_bh, 19)
    make_srd(g, srdK, P(1), 524288, st0)
    make_srd(g, srdV, P(2), 524288, st0)
    make_srd(g, srdW, P(3), 448 * 4096 * 2)
    make_srd(g, srdX, P(0), 8 * 192 * 448 * 2)
    make_srd(g, srdO, P(7), 1536 * 4096 * 2)
    vl = V(1)
    g.valu('v_and_b32', vl, 63, V(0))
    g.scmp('s_cmp_eq_u32', s_wave, 3)
    g.branch('s_cbranch_scc1', 'attn_loader')

    vhi, vlo31 = V(2), V(3)
    g.valu('v_lshrrev_b32', vhi, 5, vl)
    g.valu('v_and_b32', vlo31, 31, vl)
    g.salu('s_mul_i32', st0, s_half, 96)
    g.salu('s_lshl_b32', st1, s_wave, 5)
    g.salu('s_add_u32', st0, st0, st1)
    g.salu('s_mul_i32', st1, s_b, 192)
    g.salu('s_add_u32', st0, st0, st1)
    vrow = V(4)
    g.valu('v_add_u32', vrow, st0, vlo31)
    vx = V(5)
    g.salu('s_mov_b32', st1, 896)
    g.valu('v_mul_lo_u32', vx, vrow, st1)
    g.valu('v_lshl_add_u32', vx, vhi, 4, vx)
    xf = [A(4 * i, 4) for i in range(16)] + [A(192 + 4 * i, 4) for i in range(12)]
    for i in range(28):
        g.buf_load('buffer_load_dwordx4', xf[i], vx, srdX, 0, offset=32 * i)
    vo = V(6)
    g.salu('s_lshl_b32', st1, s_h, 9)
    g.valu('v_lshlrev_b32', vo, 13, vrow)
    g.valu('v_add_u32', vo, st1, vo)
    g.valu('v_lshl_add_u32', vo, vhi, 4, vo)
    kaddr = [V(8 + i) for i in range(8)]
    t0, t1, t2 = V(24), V(25), V(26)
    g.valu('v_and_b32', t1, 15, vlo31)
    for jj in range(8):
        g.valu('v_add_u32', t0, 2 * jj, vhi)
        g.valu('v_xor_b32', t0, t0, t1)
        g.valu('v_lshlrev_b32', t0, 4, t0)
        g.valu('v_lshl_add_u32', kaddr[jj], vlo31, 9, t0)
    vaddr = [V(16 + i) for i in range(4)]
    waddr = [V(20 + i) for i in range(4)]
    vrr, vcm, vdch = V(27), V(28), V(29)
    g.valu('v_lshrrev_b32', vrr, 2, vl)
    g.valu('v_and_b32', vrr, 3, vrr)
    g.valu('v_lshrrev_b32', t0, 4, vl)
    g.valu('v_and_b32', t0, 1, t0)
    g.valu('v_and_b32', vcm, 3, vl)
    g.valu('v_lshl_add_u32', vcm, t0, 2, vcm)
    perm_chunk_valu(g, vdch, vcm, t0)
    for tt in range(4):
        g.valu('v_xor_b32', t0, tt, vrr)
        g.valu('v_lshlrev_b32', t0, 6, t0)
        g.valu('v_lshl_add_u32', t0, vdch, 3, t0)
        g.valu('v_add_u32', t0, VRING, t0)
        g.valu('v_lshl_add_u32', t1, vhi, 2, vrr)
        g.valu('v_lshl_add_u32', vaddr[tt], t1, 9, t0)
        g.valu('v_lshl_add_u32', t1, vhi, 3, vrr)
        g.valu('v_lshl_add_u32', waddr[tt], t1, 9, t0)

    O = [V(128 + 16 * T, 16) for T in range(8)]
    KF = [A(4 * j, 4) for j in range(16)]
    VF = [[A(64 + 8 * T + 4 * s, 4) for s in range(2)] for T in range(8)]
    QF = [A(128 + 4 * j, 4) for j in range(16)]
    Sb = [V(32, 16), V(48, 16)]
    Pf = [V(64, 4), V(68, 4)]
    vm, vlsum, vtmax, vtm2 = V(72), V(73), V(74), V(75)

    def v_reads(addrs, slot, rowstep):
        out = []
        for T in range(8):
            for s in range(2):
                for r in range(2):
                    off = slot * TILE + (16 * s + rowstep * r) * 512 + (T >> 2) * 256
                    out.append(lambda T=T, s=s, r=r, off=off: g.ds_read(
                        'ds_read_b64_tr_b16', VF[T][s].sub(2 * r, 2), addrs[T & 3], off))
        return out

    def k_reads(slot):
        return [lambda j=j: g.ds_read('ds_read_b128', KF[j], kaddr[j & 7], KRING + slot * TILE + (j >> 3) * 256)
                for j in range(16)]

    for t in range(NW):
        g.barrier()
        for f in v_reads(waddr, t % 4, 4):
            f()
        for T in range(8):
            for s in range(2):
                first = (t == 0 and s == 0)
                g.mfma32(O[T], VF[T][s], xf[2 * t + s], 0 if first else O[T])
        g.wait(lgkm=0)
    for T in range(8):
        for s in range(2):
            for i in range(4):
                g.valu('v_cvt_pk_bf16_f32', V(76 + i), O[T][8 * s + 2 * i], O[T][8 * s + 2 * i + 1])
            for i in range(4):
                g.accw(QF[2 * T + s][i], V(76 + i))
    for T in range(8):
        for i in range(16):
            g.valu('v_mov_b32', O[T][i], 0)
    g.valu('v_mov_b32', vm, '0xf149f2ca')
    g.valu('v_mov_b32', vlsum, 0)

    def qk_mfmas(Sd):
        return [lambda j=j: g.mfma32(Sd, KF[j], QF[j], 0 if j == 0 else Sd) for j in range(16)]

    def max_ops(Sd):
        ops = []
        ops.append(lambda: g.valu('v_max3_f32', vtmax, Sd[0], Sd[1], Sd[2]))
        for i in range(3, 15, 2):
            ops.append(lambda i=i: g.valu('v_max3_f32', vtmax, vtmax, Sd[i], Sd[i + 1]))
        ops.append(lambda: g.valu('v_max_f32', vtmax, vtmax, Sd[15]))
        ops.append(lambda: g.valu('v_mov_b32', vtm2, vtmax))
        ops.append(lambda: g.perm32swap(vtmax, vtm2))
        ops.append(lambda: g.valu('v_max_f32', vtmax, vtmax, vtm2))
        ops.append(lambda: g.valu('v_mul_f32', vtmax, s_c, vtmax))
        ops.append(lambda: g.valu('v_sub_f32', vtm2, vtmax, vm))
        ops.append(lambda: g.vcmp('v_cmp_lt_f32', 'vcc', '0x41000000', vtm2))
        return ops

    g.barrier()
    for f in k_reads(0): f()
    for f in qk_mfmas(Sb[0]): f()
    for f in k_reads(1): f()
    for f in max_ops(Sb[0]): f()
    g.wait(lgkm=0)

    def rescale_block(tag):
        skip = g.newlabel('attn_nors')
        g.nop(4)
        g.branch('s_cbranch_vccz', skip)
        g.nop(16)
        g.valu('v_max_f32', vtmax, vtmax, vm)
        g.valu('v_sub_f32', vtm2, vm, vtmax)
        g.valu('v_exp_f32', vtm2, vtm2)
        g.valu('v_mov_b32', vm, vtmax)
        g.valu('v_mul_f32', vlsum, vlsum, vtm2)
        for T in range(8):
            for i in range(16):
                g.valu('v_mul_f32', O[T][i], O[T][i], vtm2)
        g.nop(4)
        g.label(skip)

    def iteration(t_mod4, do_qk=True, do_kread=True):
        cur, nxt = Sb[t_mod4 & 1], Sb[(t_mod4 + 1) & 1]
        g.barrier()
        rescale_block(t_mod4)
        fill = []
        vr = v_reads(vaddr, (14 + t_mod4) % 4, 8)
        sm = []
        for i in range(16):
            sm.append(lambda i=i: g.valu('v_fma_f32', cur[i], cur[i], s_c, R('v', vm.base).__str__().replace('v', '-v', 1) if False else f"-{vm}"))
        ex = [lambda i=i: g.valu('v_exp_f32', cur[i], cur[i]) for i in range(16)]
        ad = [lambda i=i: g.valu('v_add_f32', vlsum, vlsum, cur[i]) for i in range(16)]
        cv = [lambda i=i: g.valu('v_cvt_pk_bf16_f32', Pf[i >> 2][i & 3], cur[2 * i], cur[2 * i + 1]) for i in range(8)]
        for i in range(16 + 2):
            if i < 16:
                fill.append(vr[2 * i]); fill.append(vr[2 * i + 1])
                fill.append(sm[i])
            if 0 <= i - 1 < 16:
                fill.append(ex[i - 1])
            if 0 <= i - 2 < 16:
                fill.append(ad[i - 2])
                if (i - 2) & 1:
                    fill.append(cv[(i - 2) >> 1])
        if do_qk:
            interleave(g, qk_mfmas(nxt), fill)
        else:
            for f in fill: f()
        pv = []
        for s in range(2):
            for T in range(8):
                pv.append(lambda T=T, s=s: g.mfma32(O[T], VF[T][s], Pf[s], O[T]))
        fill = []
        if do_kread:
            fill += k_reads((t_mod4 + 2) % 4)
        if do_qk:
            fill = fill[:6] + max_ops(nxt) + fill[6:]
        interleave(g, pv, fill)
        g.wait(lgkm=0)

    s_cnt = S(51)
    g.salu('s_mov_b32', s_cnt, 0)
    g.label('attn_loop')
    for u in range(4):
        iteration(u)
    g.salu('s_add_u32', s_cnt, s_cnt, 1)
    g.scmp('s_cmp_lt_u32', s_cnt, 7)
    g.branch('s_cbranch_scc1', 'attn_loop')
    g.fence()
    iteration(0)
    iteration(1)
    iteration(2, do_kread=False)
    iteration(3, do_qk=False, do_kread=False)
    g.nop(16)
    g.valu('v_mov_b32', vtm2, vlsum)
    g.perm32swap(vlsum, vtm2)
    g.valu('v_add_f32', vlsum, vlsum, vtm2)
    g.valu('v_rcp_f32', vlsum, vlsum)
    for T in range(8):
        for i in range(16):
            g.valu('v_mul_f32', O[T][i], O[T][i], vlsum)
        for half in range(2):
            dst = V(80 + 8 * (T & 1) + 4 * half, 4)
            for i in range(4):
                g.valu('v_cvt_pk_bf16_f32', dst[i], O[T][8 * half + 2 * i], O[T][8 * half + 2 * i + 1])
            g.buf_store('buffer_store_dwordx4', dst, vo, srdO, 0, offset=T * 64 + half * 32)
    g.raw('s_endpgm')

    g.label('attn_loader')
    vp, vh = V(2), V(3)
    g.valu('v_and_b32', vp, 31, vl)
    g.valu('v_lshrrev_b32', vh, 5, vl)
    kv = [V(8 + i) for i in range(8)]
    vv = [V(16 + i) for i in range(2)]
    wv = [V(18 + i) for i in range(2)]
    t0 = V(24)
    for i in range(8):
        g.valu('v_add_u32', t0, 2 * i, vh)
        g.valu('v_xor_b32', t0, t0, vp)
        g.valu('v_lshlrev_b32', t0, 4, t0)
        g.valu('v_lshl_add_u32', kv[i], vh, 9, t0)
    for i in range(2):
        g.valu('v_add_u32', t0, 2 * i, vh)
        g.valu('v_lshlrev_b32', t0, 2, t0)
        g.valu('v_xor_b32', t0, t0, vp)
        g.valu('v_lshlrev_b32', t0, 4, t0)
        g.valu('v_lshl_add_u32', vv[i], vh, 9, t0)
        g.valu('v_lshl_add_u32', wv[i], vh, 13, t0)
    sKoff, sKlds, sVoff, sVlds, sWoff = S(52), S(53), S(54), S(55), S(56)
    g.salu('s_mov_b32', sKoff, 0)
    g.salu('s_mov_b32', sKlds, KRING)
    g.salu('s_mov_b32', sVoff, 0)
    g.salu('s_mov_b32', sVlds, VRING)
    g.salu('s_lshl_b32', sWoff, s_h, 9)

    def issue_lin(srd, voffs, soff, slds, ringbase):
        for q in range(4):
            g.salu('s_add_u32', 'm0', slds, q * 4096)
            g.salu('s_add_u32', st0, soff, q * 4096)
            for i4 in range(4):
                i = q * 4 + i4
                g.buf_dma(voffs[i % len(voffs)], srd, st0, offset=i4 * 1024)
        g.salu('s_add_u32', soff, soff, TILE)
        g.salu('s_add_u32', slds, slds, TILE)
        g.salu('s_and_b32', slds, slds, 0xFFFF)
        if ringbase:
            g.salu('s_add_u32', slds, slds, ringbase)

    def issue_w():
        for i in range(16):
            g.salu('s_add_u32', 'm0', sVlds, i * 1024)
            g.buf_dma(wv[i & 1], srdW, sWoff, offset=0)
            g.salu('s_add_u32', sWoff, sWoff, 16384)
        g.salu('s_add_u32', sVlds, sVlds, TILE)
        g.salu('s_and_b32', sVlds, sVlds, 0xFFFF)
        g.salu('s_add_u32', sVlds, sVlds, VRING)

    seq = [('W', j) for j in range(NW)] + [('K', 0), ('K', 1)]
    for t in range(NT):
        seq.append(('V', t))
        if t + 2 < NT:
            seq.append(('K', t + 2))
    def need(x):
        k, i = x
        if k == 'W': return i
        if k == 'V': return 15 + i
        return 14 if i < 2 else 15 + i - 2
    def slot_prev(x):
        k, i = x
        if k == 'K':
            return ('K', i - 4) if i >= 4 else None
        u = i if k == 'W' else 14 + i
        u -= 4
        if u < 0: return None
        return ('W', u) if u < 14 else ('V', u - 14)
    NEV = 15 + NT
    def qidx(j):
        return max(i for i, x in enumerate(seq) if need(x) <= j)
    sched = []
    ip = 0
    pre = []
    def can_issue(ipx, after_ev):
        x = seq[ipx]
        sp = slot_prev(x)
        if sp is not None and need(sp) + 1 > after_ev:
            return False
        nxt_ev = after_ev + 1
        if nxt_ev < NEV and ipx > qidx(nxt_ev) + 3:
            return False
        return True
    while ip < len(seq) and can_issue(ip, -1):
        pre.append(seq[ip]); ip += 1
    for j in range(NEV):
        n = 16 * (ip - (qidx(j) + 1))
        assert 0 <= n <= 63
        lst = []
        while ip < len(seq) and can_issue(ip, j):
            lst.append(seq[ip]); ip += 1
        sched.append((n, lst))
    assert ip == len(seq)
    def do_issue(x):
        if x[0] == 'W': issue_w()
        elif x[0] == 'K': issue_lin(srdK, kv, sKoff, sKlds, 0)
        else: issue_lin(srdV, vv, sVoff, sVlds, VRING)
    for x in pre: do_issue(x)
    j = 0
    s_lc = S(57)
    while j < NEV:
        n, lst = sched[j]
        kinds = [x[0] for x in lst]
        run = 1
        while j + run < NEV and sched[j + run][0] == n and [x[0] for x in sched[j + run][1]] == kinds:
            run += 1
        if run >= 4:
            lab = g.newlabel('attn_ldloop')
            g.salu('s_mov_b32', s_lc, 0)
            g.label(lab)
            g.wait(vm=n)
            g.barrier()
            for x in lst: do_issue(x)
            g.salu('s_add_u32', s_lc, s_lc, 1)
            g.scmp('s_cmp_lt_u32', s_lc, run)
            g.branch('s_cbranch_scc1', lab)
            g.fence()
            j += run
        else:
            g.wait(vm=n)
            g.barrier()
            for x in lst: do_issue(x)
            j += 1
    g.label(Lend)
    g.raw('s_endpgm')
    return kd(name, 512, 256)


def gen_oproj(g):
    name = 'oproj_kernel'
    kernel_head(g, name)
    P = lambda i: S(4 + 2 * i, 2)
    srdWo, srdO, srdOut = S(20, 4), S(24, 4), S(28, 4)
    s_mt, s_nt, s_wave, st0, st1 = S(40), S(41), S(42), S(45), S(46)
    Lend = 'oproj_end'
    g.scmp('s_cmp_ge_u32', S(2), 168)
    g.branch('s_cbranch_scc1', Lend)
    g.raw("s_load_dwordx16 s[4:19], s[0:1], 0")
    g.salu('s_mov_b32', st0, hex((2**32 + 6) // 7))
    g.salu('s_mul_hi_u32', s_mt, S(2), st0)
    g.salu('s_mul_i32', st0, s_mt, 7)
    g.salu('s_sub_u32', s_nt, S(2), st0)
    g.valu('v_lshrrev_b32', V(1), 6, V(0))
    g.readfirstlane(s_wave, V(1))
    g.wait(lgkm=0)
    make_srd(g, srdWo, P(4), 4096 * 448 * 2)
    make_srd(g, srdO, P(7), 1536 * 4096 * 2)
    make_srd(g, srdOut, P(5), 1536 * 448 * 2)
    vl, vhi, vlo31 = V(1), V(2), V(3)
    g.valu('v_and_b32', vl, 63, V(0))
    g.valu('v_lshrrev_b32', vhi, 5, vl)
    g.valu('v_and_b32', vlo31, 31, vl)
    t0, t1 = V(24), V(25)
    vrow = V(4)
    g.salu('s_lshl_b32', st0, s_mt, 6)
    g.salu('s_lshr_b32', st1, s_wave, 1)
    g.salu('s_lshl_b32', st1, st1, 5)
    g.salu('s_add_u32', st0, st0, st1)
    g.valu('v_add_u32', vrow, st0, vlo31)
    vao = V(5)
    g.valu('v_lshlrev_b32', vao, 13, vrow)
    g.valu('v_lshl_add_u32', vao, vhi, 4, vao)
    vout = V(6)
    g.salu('s_mov_b32', st1, 896)
    g.valu('v_mul_lo_u32', vout, vrow, st1)
    g.salu('s_lshl_b32', st0, s_nt, 7)
    g.salu('s_and_b32', st1, s_wave, 1)
    g.salu('s_lshl_b32', st1, st1, 6)
    g.salu('s_add_u32', st0, st0, st1)
    g.valu('v_add_u32', vout, st0, vout)
    g.valu('v_lshl_add_u32', vout, vhi, 4, vout)
    vdma = V(7)
    g.valu('v_lshrrev_b32', t0, 3, vl)
    g.valu('v_lshrrev_b32', t1, 1, t0)
    g.valu('v_and_b32', t1, 1, t1)
    g.valu('v_lshlrev_b32', t1, 2, t1)
    g.valu('v_and_b32', vdma, 7, vl)
    g.valu('v_xor_b32', vdma, vdma, t1)
    g.valu('v_lshlrev_b32', vdma, 4, vdma)
    g.salu('s_mov_b32', st1, 896)
    g.valu('v_mul_lo_u32', t0, t0, st1)
    g.valu('v_add_u32', vdma, vdma, t0)
    g.salu('s_lshl_b32', st0, s_nt, 7)
    g.salu('s_mul_i32', st1, s_wave, 16 * 896)
    g.salu('s_add_u32', st0, st0, st1)
    g.valu('v_add_u32', vdma, st0, vdma)
    vrr, vcm, vdch, vta = V(27), V(28), V(29), V(8)
    g.valu('v_lshrrev_b32', vrr, 2, vl)
    g.valu('v_and_b32', vrr, 3, vrr)
    g.valu('v_lshrrev_b32', t0, 4, vl)
    g.valu('v_and_b32', t0, 1, t0)
    g.valu('v_and_b32', vcm, 3, vl)
    g.valu('v_lshl_add_u32', vcm, t0, 2, vcm)
    perm_chunk_valu(g, vdch, vcm, t0)
    g.salu('s_and_b32', st1, s_wave, 1)
    g.valu('v_lshrrev_b32', t0, 1, vrr)
    g.valu('v_xor_b32', t0, st1, t0)
    g.valu('v_lshlrev_b32', t0, 6, t0)
    g.valu('v_lshl_add_u32', t0, vdch, 3, t0)
    g.valu('v_lshl_add_u32', t1, vhi, 3, vrr)
    g.valu('v_lshl_add_u32', vta, t1, 7, t0)
    acc = V(32, 16)
    AF = [[V(48 + 16 * b + 4 * ks, 4) for ks in range(4)] for b in range(2)]
    WF = [V(80 + 4 * ks, 4) for ks in range(4)]
    s_k, s_woff = S(50), S(51)
    g.salu('s_mov_b32', s_woff, 0)
    g.salu('s_mov_b32', s_k, 0)
    for i in range(16):
        g.valu('v_mov_b32', acc[i], 0)
    s_m0b = S(52)
    g.salu('s_lshl_b32', s_m0b, s_wave, 11)

    def issue(buf):
        g.salu('s_add_u32', 'm0', s_m0b, buf * 8192)
        g.buf_dma(vdma, srdWo, s_woff, offset=0)
        g.salu('s_add_u32', 'm0', s_m0b, buf * 8192 + 1024)
        g.salu('s_add_u32', st0, s_woff, 8 * 896)
        g.buf_dma(vdma, srdWo, st0, offset=0)
        for ks in range(4):
            g.buf_load('buffer_load_dwordx4', AF[buf][ks], vao, srdO, s_k, offset=32 * ks)
        g.salu('s_add_u32', s_woff, s_woff, 64 * 896)
        g.salu('s_add_u32', s_k, s_k, 128)

    issue(0)
    s_it = S(53)
    g.salu('s_mov_b32', s_it, 0)
    g.label('oproj_loop')
    for buf in range(2):
        g.wait(vm=0)
        g.barrier()
        issue(1 - buf)
        for ks in range(4):
            for r in range(2):
                g.ds_read('ds_read_b64_tr_b16', WF[ks].sub(2 * r, 2), vta, buf * 8192 + (16 * ks + 4 * r) * 128)
        g.vm = []
        for ks in range(4):
            g.mfma32(acc, WF[ks], AF[buf][ks], acc)
        g.wait(lgkm=0)
    g.salu('s_add_u32', s_it, s_it, 1)
    g.scmp('s_cmp_lt_u32', s_it, 32)
    g.branch('s_cbranch_scc1', 'oproj_loop')
    g.fence()
    g.wait(vm=0)
    g.nop(16)
    for half in range(2):
        dst = V(100 + 4 * half, 4)
        for i in range(4):
            g.valu('v_cvt_pk_bf16_f32', dst[i], acc[8 * half + 2 * i], acc[8 * half + 2 * i + 1])
        g.buf_store('buffer_store_dwordx4', dst, vout, srdOut, 0, offset=half * 32)
    g.label(Lend)
    g.raw('s_endpgm')
    return kd(name, 128, 128)


def main():
    out = HEADER
    out += "; @launch kernel=attn_kernel grid=(256,1,1) block=(256,1,1) lds=131072\n"
    out += "; @launch kernel=oproj_kernel grid=(168,1,1) block=(256,1,1) lds=16384\n"
    out += '.amdgcn_target "amdgcn-amd-amdhsa--gfx950"\n.text\n'
    g = Gen(); k1 = gen_attn(g); out += g.text() + k1
    g = Gen(); g.nlabel = 1000; k2 = gen_oproj(g); out += g.text() + k2
    open('standalone__mha_block_cached__near_ridge.s', 'w').write(out)

main()
```

```python
import sys, math
sys.path.insert(0, 'gen')
from asmgen import *

HEADER = """; Kernarg layout for this problem (64 bytes, ptrs only, base s[0:1]):
"""

def kd(name, vgpr, acc_off, sgpr=102):
    return f""".section .rodata,"a"
.p2align 6
.amdhsa_kernel {name}
  .amdhsa_next_free_vgpr {vgpr}
  .amdhsa_next_free_sgpr {sgpr}
  .amdhsa_accum_offset {acc_off}
  .amdhsa_group_segment_fixed_size 0
  .amdhsa_kernarg_size 64
  .amdhsa_user_sgpr_count 2
  .amdhsa_user_sgpr_kernarg_segment_ptr 1
  .amdhsa_system_sgpr_workgroup_id_x 1
.end_amdhsa_kernel
.text
"""

def kernel_head(g, name):
    g.lines.append(f".globl {name}")
    g.lines.append(".p2align 8")
    g.lines.append(f".type {name},@function")
    g.lines.append(f"{name}:")
    g.fence()

def make_srd(g, srd, ptr, nbytes, add_lo=None):
    if add_lo is None:
        g.salu('s_mov_b32', srd[0], ptr[0])
        g.salu('s_mov_b32', srd[1], ptr[1])
    else:
        g.salu('s_add_u32', srd[0], ptr[0], add_lo)
        g.salu('s_addc_u32', srd[1], ptr[1], 0)
    g.salu('s_mov_b32', srd[2], hex(nbytes))
    g.salu('s_mov_b32', srd[3], '0x00020000')

def perm_chunk_valu(g, dst, cm, tmp):
    g.valu('v_and_b32', dst, 4, cm)
    g.valu('v_and_b32', tmp, 1, cm)
    g.valu('v_lshlrev_b32', tmp, 1, tmp)
    g.valu('v_or_b32', dst, dst, tmp)
    g.valu('v_lshrrev_b32', tmp, 1, cm)
    g.valu('v_and_b32', tmp, 1, tmp)
    g.valu('v_or_b32', dst, dst, tmp)

import os
EXP = os.environ.get('EXP', '')
NT = 32
NW = 14
KRING = 0
VRING = 65536
TILE = 16384

def interleave(g, mf, fill):
    n = len(mf)
    k = 0
    for i, m in enumerate(mf):
        m()
        upto = (len(fill) * (i + 1)) // n
        while k < upto:
            fill[k]()
            k += 1

def gen_attn(g):
    name = 'attn_kernel'
    kernel_head(g, name)
    P = lambda i: S(4 + 2 * i, 2)
    srdK, srdV, srdW, srdX, srdO = S(20, 4), S(24, 4), S(28, 4), S(32, 4), S(36, 4)
    s_bh, s_half, s_b, s_h, s_wave = S(40), S(41), S(42), S(43), S(44)
    st0, st1 = S(45), S(46)
    s_c = S(50)
    Lend = 'attn_end'
    g.scmp('s_cmp_ge_u32', S(2), 256)
    g.branch('s_cbranch_scc1', Lend)
    g.raw("s_load_dwordx16 s[4:19], s[0:1], 0")
    g.salu('s_lshr_b32', st0, S(2), 4)
    g.salu('s_lshl_b32', st0, st0, 3)
    g.salu('s_and_b32', st1, S(2), 7)
    g.salu('s_add_u32', s_bh, st0, st1)
    g.salu('s_lshr_b32', st0, S(2), 3)
    g.salu('s_and_b32', s_half, st0, 1)
    g.salu('s_lshr_b32', s_b, s_bh, 4)
    g.salu('s_and_b32', s_h, s_bh, 15)
    g.valu('v_lshrrev_b32', V(1), 6, V(0))
    g.readfirstlane(s_wave, V(1))
    g.salu('s_mov_b32', s_c, hex(0x3db8aa3b))
    import struct
    cval = struct.unpack('<I', struct.pack('<f', math.log2(math.e) / 16.0))[0]
    g.lines[-1] = f"    s_mov_b32 s50, {hex(cval)}"
    g.wait(lgkm=0)
    g.salu('s_lshl_b32', st0, s_bh, 19)
    make_srd(g, srdK, P(1), 524288, st0)
    make_srd(g, srdV, P(2), 524288, st0)
    make_srd(g, srdW, P(3), 448 * 4096 * 2)
    make_srd(g, srdX, P(0), 8 * 192 * 448 * 2)
    make_srd(g, srdO, P(7), 1536 * 4096 * 2)
    vl = V(1)
    g.valu('v_and_b32', vl, 63, V(0))
    g.scmp('s_cmp_eq_u32', s_wave, 3)
    g.branch('s_cbranch_scc1', 'attn_loader')

    vhi, vlo31 = V(2), V(3)
    g.valu('v_lshrrev_b32', vhi, 5, vl)
    g.valu('v_and_b32', vlo31, 31, vl)
    g.salu('s_mul_i32', st0, s_half, 96)
    g.salu('s_lshl_b32', st1, s_wave, 5)
    g.salu('s_add_u32', st0, st0, st1)
    g.salu('s_mul_i32', st1, s_b, 192)
    g.salu('s_add_u32', st0, st0, st1)
    vrow = V(4)
    g.valu('v_add_u32', vrow, st0, vlo31)
    vx = V(5)
    g.salu('s_mov_b32', st1, 896)
    g.valu('v_mul_lo_u32', vx, vrow, st1)
    g.valu('v_lshl_add_u32', vx, vhi, 4, vx)
    xf = [A(4 * i, 4) for i in range(16)] + [A(192 + 4 * i, 4) for i in range(12)]
    for i in range(28):
        g.buf_load('buffer_load_dwordx4', xf[i], vx, srdX, 0, offset=32 * i)
    vo = V(6)
    g.salu('s_lshl_b32', st1, s_h, 9)
    g.valu('v_lshlrev_b32', vo, 13, vrow)
    g.valu('v_add_u32', vo, st1, vo)
    g.valu('v_lshl_add_u32', vo, vhi, 4, vo)
    kaddr = [V(8 + i) for i in range(8)]
    t0, t1, t2 = V(24), V(25), V(26)
    g.valu('v_and_b32', t1, 15, vlo31)
    for jj in range(8):
        g.valu('v_add_u32', t0, 2 * jj, vhi)
        g.valu('v_xor_b32', t0, t0, t1)
        g.valu('v_lshlrev_b32', t0, 4, t0)
        g.valu('v_lshl_add_u32', kaddr[jj], vlo31, 9, t0)
    vaddr = [V(16 + i) for i in range(4)]
    waddr = [V(20 + i) for i in range(4)]
    vrr, vcm, vdch = V(27), V(28), V(29)
    g.valu('v_lshrrev_b32', vrr, 2, vl)
    g.valu('v_and_b32', vrr, 3, vrr)
    g.valu('v_lshrrev_b32', t0, 4, vl)
    g.valu('v_and_b32', t0, 1, t0)
    g.valu('v_and_b32', vcm, 3, vl)
    g.valu('v_lshl_add_u32', vcm, t0, 2, vcm)
    perm_chunk_valu(g, vdch, vcm, t0)
    for tt in range(4):
        g.valu('v_xor_b32', t0, tt, vrr)
        g.valu('v_lshlrev_b32', t0, 6, t0)
        g.valu('v_lshl_add_u32', t0, vdch, 3, t0)
        g.valu('v_add_u32', t0, VRING, t0)
        g.valu('v_lshl_add_u32', t1, vhi, 2, vrr)
        g.valu('v_lshl_add_u32', vaddr[tt], t1, 9, t0)
        g.valu('v_lshl_add_u32', t1, vhi, 3, vrr)
        g.valu('v_lshl_add_u32', waddr[tt], t1, 9, t0)

    O = [V(128 + 16 * T, 16) for T in range(8)]
    KF = [A(4 * j, 4) for j in range(16)]
    VF = [[A(64 + 8 * T + 4 * s, 4) for s in range(2)] for T in range(8)]
    QF = [A(128 + 4 * j, 4) for j in range(16)]
    Sb = [V(32, 16), V(48, 16)]
    Pf = [V(64, 4), V(68, 4)]
    vm, vlsum, vtmax, vtm2 = V(72), V(73), V(74), V(75)

    def v_reads(addrs, slot, rowstep):
        out = []
        for T in range(8):
            for s in range(2):
                for r in range(2):
                    off = slot * TILE + (16 * s + rowstep * r) * 512 + (T >> 2) * 256
                    out.append(lambda T=T, s=s, r=r, off=off: g.ds_read(
                        'ds_read_b64_tr_b16', VF[T][s].sub(2 * r, 2), addrs[T & 3], off))
        return out

    def k_reads(slot):
        return [lambda j=j: g.ds_read('ds_read_b128', KF[j], kaddr[j & 7], KRING + slot * TILE + (j >> 3) * 256)
                for j in range(16)]

    for t in range(NW):
        g.barrier()
        for f in v_reads(waddr, t % 4, 4):
            f()
        for T in range(8):
            for s in range(2):
                first = (t == 0 and s == 0)
                g.mfma32(O[T], VF[T][s], xf[2 * t + s], 0 if first else O[T])
        g.wait(lgkm=0)
    for T in range(8):
        for s in range(2):
            for i in range(4):
                g.valu('v_cvt_pk_bf16_f32', V(76 + i), O[T][8 * s + 2 * i], O[T][8 * s + 2 * i + 1])
            for i in range(4):
                g.accw(QF[2 * T + s][i], V(76 + i))
    for T in range(8):
        for i in range(16):
            g.valu('v_mov_b32', O[T][i], 0)
    g.valu('v_mov_b32', vm, '0xf149f2ca')
    g.valu('v_mov_b32', vlsum, 0)

    def qk_mfmas(Sd):
        return [lambda j=j: g.mfma32(Sd, KF[j], QF[j], 0 if j == 0 else Sd) for j in range(16)]

    def max_ops(Sd):
        ops = []
        ops.append(lambda: g.valu('v_max3_f32', vtmax, Sd[0], Sd[1], Sd[2]))
        for i in range(3, 15, 2):
            ops.append(lambda i=i: g.valu('v_max3_f32', vtmax, vtmax, Sd[i], Sd[i + 1]))
        ops.append(lambda: g.valu('v_max_f32', vtmax, vtmax, Sd[15]))
        ops.append(lambda: g.valu('v_mov_b32', vtm2, vtmax))
        ops.append(lambda: g.perm32swap(vtmax, vtm2))
        ops.append(lambda: g.valu('v_max_f32', vtmax, vtmax, vtm2))
        ops.append(lambda: g.valu('v_mul_f32', vtmax, s_c, vtmax))
        ops.append(lambda: g.valu('v_sub_f32', vtm2, vtmax, vm))
        ops.append(lambda: g.vcmp('v_cmp_lt_f32', 'vcc', '0x41000000', vtm2))
        return ops

    g.barrier()
    for f in k_reads(0): f()
    for f in qk_mfmas(Sb[0]): f()
    for f in k_reads(1): f()
    for f in max_ops(Sb[0]): f()
    g.wait(lgkm=0)

    def rescale_block(tag):
        skip = g.newlabel('attn_nors')
        g.nop(4)
        g.branch('s_cbranch_vccz', skip)
        g.nop(16)
        g.valu('v_max_f32', vtmax, vtmax, vm)
        g.valu('v_sub_f32', vtm2, vm, vtmax)
        g.valu('v_exp_f32', vtm2, vtm2)
        g.valu('v_mov_b32', vm, vtmax)
        g.valu('v_mul_f32', vlsum, vlsum, vtm2)
        for T in range(8):
            for i in range(16):
                g.valu('v_mul_f32', O[T][i], O[T][i], vtm2)
        g.nop(4)
        g.label(skip)

    def iteration(t_mod4, do_qk=True, do_kread=True):
        cur, nxt = Sb[t_mod4 & 1], Sb[(t_mod4 + 1) & 1]
        g.barrier()
        if 'nocomp' in EXP: return
        rescale_block(t_mod4)
        fill = []
        vr = v_reads(vaddr, (14 + t_mod4) % 4, 8)
        sm = []
        for i in range(16):
            sm.append(lambda i=i: g.valu('v_fma_f32', cur[i], cur[i], s_c, R('v', vm.base).__str__().replace('v', '-v', 1) if False else f"-{vm}"))
        ex = [lambda i=i: g.valu('v_exp_f32', cur[i], cur[i]) for i in range(16)]
        ad = [lambda i=i: g.valu('v_add_f32', vlsum, vlsum, cur[i]) for i in range(16)]
        cv = [lambda i=i: g.valu('v_cvt_pk_bf16_f32', Pf[i >> 2][i & 3], cur[2 * i], cur[2 * i + 1]) for i in range(8)]
        for i in range(16 + 2):
            if i < 16:
                fill.append(vr[2 * i]); fill.append(vr[2 * i + 1])
                fill.append(sm[i])
            if 0 <= i - 1 < 16:
                fill.append(ex[i - 1])
            if 0 <= i - 2 < 16:
                fill.append(ad[i - 2])
                if (i - 2) & 1:
                    fill.append(cv[(i - 2) >> 1])
        if do_qk:
            interleave(g, qk_mfmas(nxt), fill)
        else:
            for f in fill: f()
        pv = []
        for s in range(2):
            for T in range(8):
                pv.append(lambda T=T, s=s: g.mfma32(O[T], VF[T][s], Pf[s], O[T]))
        fill = []
        if do_kread:
            fill += k_reads((t_mod4 + 2) % 4)
        if do_qk:
            fill = fill[:6] + max_ops(nxt) + fill[6:]
        interleave(g, pv, fill)
        g.wait(lgkm=0)

    s_cnt = S(51)
    g.salu('s_mov_b32', s_cnt, 0)
    g.label('attn_loop')
    for u in range(4):
        iteration(u)
    g.salu('s_add_u32', s_cnt, s_cnt, 1)
    g.scmp('s_cmp_lt_u32', s_cnt, 7)
    g.branch('s_cbranch_scc1', 'attn_loop')
    g.fence()
    iteration(0)
    iteration(1)
    iteration(2, do_kread=False)
    iteration(3, do_qk=False, do_kread=False)
    g.nop(16)
    g.valu('v_mov_b32', vtm2, vlsum)
    g.perm32swap(vlsum, vtm2)
    g.valu('v_add_f32', vlsum, vlsum, vtm2)
    g.valu('v_rcp_f32', vlsum, vlsum)
    for T in range(8):
        for i in range(16):
            g.valu('v_mul_f32', O[T][i], O[T][i], vlsum)
        for half in range(2):
            dst = V(80 + 8 * (T & 1) + 4 * half, 4)
            for i in range(4):
                g.valu('v_cvt_pk_bf16_f32', dst[i], O[T][8 * half + 2 * i], O[T][8 * half + 2 * i + 1])
            g.buf_store('buffer_store_dwordx4', dst, vo, srdO, 0, offset=T * 64 + half * 32)
    g.raw('s_endpgm')

    g.label('attn_loader')
    vp, vh = V(2), V(3)
    g.valu('v_and_b32', vp, 31, vl)
    g.valu('v_lshrrev_b32', vh, 5, vl)
    kv = [V(8 + i) for i in range(8)]
    vv = [V(16 + i) for i in range(2)]
    wv = [V(18 + i) for i in range(2)]
    t0 = V(24)
    for i in range(8):
        g.valu('v_add_u32', t0, 2 * i, vh)
        g.valu('v_xor_b32', t0, t0, vp)
        g.valu('v_lshlrev_b32', t0, 4, t0)
        g.valu('v_lshl_add_u32', kv[i], vh, 9, t0)
    for i in range(2):
        g.valu('v_add_u32', t0, 2 * i, vh)
        g.valu('v_lshlrev_b32', t0, 2, t0)
        g.valu('v_xor_b32', t0, t0, vp)
        g.valu('v_lshlrev_b32', t0, 4, t0)
        g.valu('v_lshl_add_u32', vv[i], vh, 9, t0)
        g.valu('v_lshl_add_u32', wv[i], vh, 13, t0)
    sKoff, sKlds, sVoff, sVlds, sWoff = S(52), S(53), S(54), S(55), S(56)
    g.salu('s_mul_i32', sKoff, s_bh, 11)
    g.salu('s_and_b32', sKoff, sKoff, 31)
    g.salu('s_lshl_b32', sKoff, sKoff, 14)
    g.salu('s_mov_b32', sKlds, KRING)
    g.salu('s_mov_b32', sVoff, sKoff)
    g.salu('s_mov_b32', sVlds, VRING)
    g.salu('s_lshl_b32', sWoff, s_h, 9)

    def issue_lin(srd, voffs, soff, slds, ringbase):
        for q in range(4):
            g.salu('s_add_u32', 'm0', slds, q * 4096)
            g.salu('s_add_u32', st0, soff, q * 4096)
            for i4 in range(4):
                i = q * 4 + i4
                g.buf_dma(voffs[i % len(voffs)], srd, st0, offset=i4 * 1024)
        g.salu('s_add_u32', soff, soff, TILE)
        g.salu('s_and_b32', soff, soff, 0x7FFFF)
        g.salu('s_add_u32', slds, slds, TILE)
        g.salu('s_and_b32', slds, slds, 0xFFFF)
        if ringbase:
            g.salu('s_add_u32', slds, slds, ringbase)

    def issue_w():
        for i in range(16):
            g.salu('s_add_u32', 'm0', sVlds, i * 1024)
            g.buf_dma(wv[i & 1], srdW, sWoff, offset=0)
            g.salu('s_add_u32', sWoff, sWoff, 16384)
        g.salu('s_add_u32', sVlds, sVlds, TILE)
        g.salu('s_and_b32', sVlds, sVlds, 0xFFFF)
        g.salu('s_add_u32', sVlds, sVlds, VRING)

    seq = [('W', j) for j in range(NW)] + [('K', 0), ('K', 1)]
    for t in range(NT):
        seq.append(('V', t))
        if t + 2 < NT:
            seq.append(('K', t + 2))
    def need(x):
        k, i = x
        if k == 'W': return i
        if k == 'V': return 15 + i
        return 14 if i < 2 else 15 + i - 2
    def slot_prev(x):
        k, i = x
        if k == 'K':
            return ('K', i - 4) if i >= 4 else None
        u = i if k == 'W' else 14 + i
        u -= 4
        if u < 0: return None
        return ('W', u) if u < 14 else ('V', u - 14)
    NEV = 15 + NT
    def qidx(j):
        return max(i for i, x in enumerate(seq) if need(x) <= j)
    sched = []
    ip = 0
    pre = []
    def can_issue(ipx, after_ev):
        x = seq[ipx]
        sp = slot_prev(x)
        if sp is not None and need(sp) + 1 > after_ev:
            return False
        nxt_ev = after_ev + 1
        if nxt_ev < NEV and ipx > qidx(nxt_ev) + 3:
            return False
        return True
    while ip < len(seq) and can_issue(ip, -1):
        pre.append(seq[ip]); ip += 1
    for j in range(NEV):
        n = 16 * (ip - (qidx(j) + 1))
        assert 0 <= n <= 63
        lst = []
        while ip < len(seq) and can_issue(ip, j):
            lst.append(seq[ip]); ip += 1
        sched.append((n, lst))
    assert ip == len(seq)
    def do_issue(x):
        if 'nodma' in EXP: return
        if x[0] == 'W': issue_w()
        elif x[0] == 'K': issue_lin(srdK, kv, sKoff, sKlds, 0)
        else: issue_lin(srdV, vv, sVoff, sVlds, VRING)
    for x in pre: do_issue(x)
    j = 0
    s_lc = S(57)
    while j < NEV:
        n, lst = sched[j]
        kinds = [x[0] for x in lst]
        run = 1
        while j + run < NEV and sched[j + run][0] == n and [x[0] for x in sched[j + run][1]] == kinds:
            run += 1
        if run >= 4:
            lab = g.newlabel('attn_ldloop')
            g.salu('s_mov_b32', s_lc, 0)
            g.label(lab)
            g.wait(vm=n)
            g.barrier()
            for x in lst: do_issue(x)
            g.salu('s_add_u32', s_lc, s_lc, 1)
            g.scmp('s_cmp_lt_u32', s_lc, run)
            g.branch('s_cbranch_scc1', lab)
            g.fence()
            j += run
        else:
            g.wait(vm=n)
            g.barrier()
            for x in lst: do_issue(x)
            j += 1
    g.label(Lend)
    g.raw('s_endpgm')
    return kd(name, 512, 256)


def gen_oproj(g):
    name = 'oproj_kernel'
    kernel_head(g, name)
    P = lambda i: S(4 + 2 * i, 2)
    srdWo, srdO, srdOut = S(20, 4), S(24, 4), S(28, 4)
    s_rb, s_nb, s_wave, st0, st1 = S(40), S(41), S(42), S(45), S(46)
    Lend = 'oproj_end'
    SL = 28672
    g.scmp('s_cmp_ge_u32', S(2), 224)
    g.branch('s_cbranch_scc1', Lend)
    g.raw("s_load_dwordx16 s[4:19], s[0:1], 0")
    g.salu('s_lshr_b32', st1, S(2), 3)
    g.salu('s_mov_b32', st0, hex((2**32 + 6) // 7))
    g.salu('s_mul_hi_u32', s_rb, st1, st0)
    g.salu('s_mul_i32', st0, s_rb, 7)
    g.salu('s_sub_u32', s_nb, st1, st0)
    g.salu('s_and_b32', st0, S(2), 7)
    g.salu('s_lshl_b32', st0, st0, 2)
    g.salu('s_add_u32', s_rb, s_rb, st0)
    g.salu('s_mul_i32', s_rb, s_rb, 48)
    g.valu('v_lshrrev_b32', V(1), 6, V(0))
    g.readfirstlane(s_wave, V(1))
    g.wait(lgkm=0)
    make_srd(g, srdWo, P(4), 4096 * 448 * 2)
    make_srd(g, srdO, P(7), 1536 * 4096 * 2)
    make_srd(g, srdOut, P(5), 1536 * 448 * 2)
    vl = V(1)
    g.valu('v_and_b32', vl, 63, V(0))
    t0, t1, t2 = V(24), V(25), V(26)
    vO = [V(2 + j) for j in range(3)]
    vW = [V(5 + j) for j in range(4)]
    g.valu('v_lshrrev_b32', t0, 4, vl)
    g.valu('v_and_b32', t1, 15, vl)
    g.salu('s_mul_i32', st0, s_wave, 12)
    for j in range(3):
        g.valu('v_add_u32', t2, st0, t0)
        g.valu('v_add_u32', t2, 4 * j, t2)
        g.valu('v_and_b32', vO[j], 15, t2)
        g.valu('v_xor_b32', vO[j], vO[j], t1)
        g.valu('v_lshlrev_b32', vO[j], 4, vO[j])
        g.valu('v_add_u32', t2, s_rb, t2)
        g.valu('v_lshl_add_u32', vO[j], t2, 13, vO[j])
    g.valu('v_lshrrev_b32', t0, 3, vl)
    g.valu('v_and_b32', t1, 7, vl)
    g.valu('v_lshrrev_b32', t2, 1, t0)
    g.valu('v_and_b32', t2, 1, t2)
    g.salu('s_lshl_b32', st0, s_wave, 5)
    g.salu('s_mov_b32', st1, 896)
    for j in range(4):
        g.valu('v_or_b32', vW[j], (j & 1) << 1, t2)
        g.valu('v_lshlrev_b32', vW[j], 1, vW[j])
        g.valu('v_xor_b32', vW[j], vW[j], t1)
        g.valu('v_lshlrev_b32', vW[j], 4, vW[j])
        g.valu('v_add_u32', V(27), st0, t0)
        g.valu('v_add_u32', V(27), 8 * j, V(27))
        g.valu('v_mul_lo_u32', V(27), V(27), st1)
        g.valu('v_add_u32', vW[j], vW[j], V(27))
    g.salu('s_lshl_b32', st0, s_nb, 7)
    for j in range(4):
        g.valu('v_add_u32', vW[j], st0, vW[j])
    vB = [V(10 + ks) for ks in range(4)]
    vA = V(14)
    g.valu('v_and_b32', t0, 15, vl)
    g.valu('v_lshrrev_b32', t1, 4, vl)
    for ks in range(4):
        g.valu('v_add_u32', t2, 4 * ks, t1)
        g.valu('v_xor_b32', t2, t2, t0)
        g.valu('v_lshlrev_b32', t2, 4, t2)
        g.valu('v_lshl_add_u32', vB[ks], t0, 8, t2)
    vrr = V(27)
    g.valu('v_lshrrev_b32', vrr, 2, vl)
    g.valu('v_and_b32', vrr, 3, vrr)
    g.valu('v_lshrrev_b32', t2, 1, vrr)
    g.valu('v_and_b32', t0, 1, t1)
    g.valu('v_lshl_or_b32', t2, t0, 1, t2)
    g.valu('v_xor_b32', t2, s_wave, t2)
    g.valu('v_lshlrev_b32', t2, 5, t2)
    g.valu('v_and_b32', t0, 3, vl)
    g.valu('v_lshl_add_u32', t2, t0, 3, t2)
    g.valu('v_lshl_add_u32', t0, t1, 3, vrr)
    g.valu('v_lshl_add_u32', vA, t0, 7, t2)
    g.valu('v_add_u32', vA, 12288, vA)
    vB2 = [V(16 + ks) for ks in range(4)]
    vA2 = V(20)
    for ks in range(4):
        g.valu('v_add_u32', vB2[ks], 2 * SL, vB[ks])
    g.valu('v_add_u32', vA2, 2 * SL, vA)
    vout = V(15)
    g.valu('v_and_b32', t0, 15, vl)
    g.valu('v_add_u32', t0, s_rb, t0)
    g.valu('v_mul_lo_u32', vout, t0, st1)
    g.salu('s_lshl_b32', st0, s_nb, 7)
    g.salu('s_lshl_b32', S(47), s_wave, 5)
    g.salu('s_add_u32', st0, st0, S(47))
    g.valu('v_add_u32', vout, st0, vout)
    g.valu('v_lshl_add_u32', vout, t1, 3, vout)
    acc = [V(32 + 4 * rt, 4) for rt in range(3)]
    BF = [[V(48 + 16 * rt + 4 * ks, 4) for ks in range(4)] for rt in range(3)]
    AF = [V(96 + 4 * ks, 4) for ks in range(4)]
    for rt in range(3):
        for i in range(4):
            g.valu('v_mov_b32', acc[rt][i], 0)
    s_ko, s_kw = S(50), S(51)
    g.salu('s_mov_b32', s_ko, 0)
    g.salu('s_mov_b32', s_kw, 0)
    s_mo, s_mw = S(52), S(53)
    g.salu('s_mul_i32', s_mo, s_wave, 3072)
    g.salu('s_lshl_b32', s_mw, s_wave, 12)
    g.salu('s_add_u32', s_mw, s_mw, 12288)

    def issue(slot):
        for j in range(3):
            g.salu('s_add_u32', 'm0', s_mo, slot * SL + j * 1024)
            g.buf_dma(vO[j], srdO, s_ko, offset=0)
        for j in range(4):
            g.salu('s_add_u32', 'm0', s_mw, slot * SL + j * 1024)
            g.buf_dma(vW[j], srdWo, s_kw, offset=0)
        g.salu('s_add_u32', s_ko, s_ko, 256)
        g.salu('s_add_u32', s_kw, s_kw, 128 * 896)

    def step(slot, vmwait, do_issue):
        g.wait(vm=vmwait)
        g.barrier()
        if do_issue:
            issue((slot + 3) % 4)
        for ks in range(4):
            for r in range(2):
                g.ds_read('ds_read_b64_tr_b16', AF[ks].sub(2 * r, 2), vA if slot < 2 else vA2, (slot & 1) * SL + (32 * ks + 4 * r) * 128)
            for rt in range(3):
                g.ds_read('ds_read_b128', BF[rt][ks], (vB if slot < 2 else vB2)[ks], (slot & 1) * SL + rt * 4096)
        for ks in range(4):
            for rt in range(3):
                g.mfma16(acc[rt], AF[ks], BF[rt][ks], acc[rt])
        g.wait(lgkm=0)

    for sl in range(3):
        issue(sl)
    s_it = S(54)
    g.salu('s_mov_b32', s_it, 0)
    g.label('oproj_loop')
    for sl in range(4):
        step(sl, 14, True)
    g.salu('s_add_u32', s_it, s_it, 1)
    g.scmp('s_cmp_lt_u32', s_it, 7)
    g.branch('s_cbranch_scc1', 'oproj_loop')
    g.fence()
    step(0, 14, True)
    step(1, 14, False)
    step(2, 7, False)
    step(3, 0, False)
    g.nop(10)
    for rt in range(3):
        dst = V(112 + 2 * rt, 2)
        g.valu('v_cvt_pk_bf16_f32', dst[0], acc[rt][0], acc[rt][1])
        g.valu('v_cvt_pk_bf16_f32', dst[1], acc[rt][2], acc[rt][3])
        g.salu('s_mov_b32', st0, rt * 16 * 896)
        g.buf_store('buffer_store_dwordx2', dst, vout, srdOut, st0, offset=0)
    g.label(Lend)
    g.raw('s_endpgm')
    return kd(name, 128, 128)


def main():
    out = HEADER
    out += "; @launch kernel=attn_kernel grid=(256,1,1) block=(256,1,1) lds=131072\n"
    out += "; @launch kernel=oproj_kernel grid=(224,1,1) block=(256,1,1) lds=114688\n"
    out += '.amdgcn_target "amdgcn-amd-amdhsa--gfx950"\n.text\n'
    g = Gen(); k1 = gen_attn(g); out += g.text() + k1
    g = Gen(); g.nlabel = 1000; k2 = gen_oproj(g); out += g.text() + k2
    open(os.environ.get('OUT', 'standalone__mha_block_cached__near_ridge.s'), 'w').write(out)

if __name__ == "__main__":
    main()
```

```python
import sys, math
sys.path.insert(0, 'gen')
from asmgen import *

HEADER = """; Kernarg layout for this problem (64 bytes, ptrs only, base s[0:1]):
"""

def kd(name, vgpr, acc_off, sgpr=102):
    return f""".section .rodata,"a"
.p2align 6
.amdhsa_kernel {name}
  .amdhsa_next_free_vgpr {vgpr}
  .amdhsa_next_free_sgpr {sgpr}
  .amdhsa_accum_offset {acc_off}
  .amdhsa_group_segment_fixed_size 0
  .amdhsa_kernarg_size 64
  .amdhsa_user_sgpr_count 2
  .amdhsa_user_sgpr_kernarg_segment_ptr 1
  .amdhsa_system_sgpr_workgroup_id_x 1
.end_amdhsa_kernel
.text
"""

def kernel_head(g, name):
    g.lines.append(f".globl {name}")
    g.lines.append(".p2align 8")
    g.lines.append(f".type {name},@function")
    g.lines.append(f"{name}:")
    g.fence()

def make_srd(g, srd, ptr, nbytes, add_lo=None):
    if add_lo is None:
        g.salu('s_mov_b32', srd[0], ptr[0])
        g.salu('s_mov_b32', srd[1], ptr[1])
    else:
        g.salu('s_add_u32', srd[0], ptr[0], add_lo)
        g.salu('s_addc_u32', srd[1], ptr[1], 0)
    g.salu('s_mov_b32', srd[2], hex(nbytes))
    g.salu('s_mov_b32', srd[3], '0x00020000')

def perm_chunk_valu(g, dst, cm, tmp):
    g.valu('v_and_b32', dst, 4, cm)
    g.valu('v_and_b32', tmp, 1, cm)
    g.valu('v_lshlrev_b32', tmp, 1, tmp)
    g.valu('v_or_b32', dst, dst, tmp)
    g.valu('v_lshrrev_b32', tmp, 1, cm)
    g.valu('v_and_b32', tmp, 1, tmp)
    g.valu('v_or_b32', dst, dst, tmp)

import os
EXP = os.environ.get('EXP', '')
WFLAGS = os.environ.get('WFLAGS', '')
XFLAGS = os.environ.get('XFLAGS', '')
NT = 32
NW = 14
KRING = 0
NKS = 6
VRING = 98304
TILE = 16384

def interleave(g, mf, fill):
    n = len(mf)
    k = 0
    for i, m in enumerate(mf):
        m()
        upto = (len(fill) * (i + 1)) // n
        while k < upto:
            fill[k]()
            k += 1

def gen_attn(g):
    import struct
    name = 'attn_kernel'
    kernel_head(g, name)
    P = lambda i: S(4 + 2 * i, 2)
    srdK, srdV, srdW, srdX, srdO = S(20, 4), S(24, 4), S(28, 4), S(32, 4), S(36, 4)
    s_bh, s_half, s_b, s_h, s_wave = S(40), S(41), S(42), S(43), S(44)
    st0, st1 = S(45), S(46)
    s_c = S(50)
    s_rot = S(58)
    Lend = 'attn_end'
    g.scmp('s_cmp_ge_u32', S(2), 256)
    g.branch('s_cbranch_scc1', Lend)
    g.raw("s_load_dwordx16 s[4:19], s[0:1], 0")
    g.salu('s_lshr_b32', st0, S(2), 4)
    g.salu('s_lshl_b32', st0, st0, 3)
    g.salu('s_and_b32', st1, S(2), 7)
    g.salu('s_add_u32', s_bh, st0, st1)
    g.salu('s_lshr_b32', st0, S(2), 3)
    g.salu('s_and_b32', s_half, st0, 1)
    g.salu('s_lshr_b32', s_b, s_bh, 4)
    g.salu('s_and_b32', s_h, s_bh, 15)
    g.valu('v_lshrrev_b32', V(1), 6, V(0))
    g.readfirstlane(s_wave, V(1))
    cval = struct.unpack('<I', struct.pack('<f', math.log2(math.e) / 16.0))[0]
    g.salu('s_mov_b32', s_c, hex(cval))
    g.salu('s_mul_i32', s_rot, s_bh, 11)
    g.salu('s_and_b32', s_rot, s_rot, 31)
    g.salu('s_lshl_b32', s_rot, s_rot, 14)
    s_wrot = S(65)
    g.salu('s_lshl_b32', s_wrot, s_b, 1)
    g.salu('s_add_u32', s_wrot, s_wrot, s_half)
    g.scmp('s_cmp_ge_u32', s_wrot, 14)
    g.ins(f"s_cselect_b32 {st0}, 14, 0", 'salu', writes=[st0])
    g.salu('s_sub_u32', s_wrot, s_wrot, st0)
    def wtile_idx(dst, pos):
        g.salu('s_add_u32', dst, s_wrot, pos)
        g.scmp('s_cmp_ge_u32', dst, 14)
        g.ins(f"s_cselect_b32 {st1}, 14, 0", 'salu', writes=[st1])
        g.salu('s_sub_u32', dst, dst, st1)
    g.wait(lgkm=0)
    g.salu('s_lshl_b32', st0, s_bh, 19)
    make_srd(g, srdK, P(1), 524288, st0)
    make_srd(g, srdV, P(2), 524288, st0)
    make_srd(g, srdW, P(3), 448 * 4096 * 2)
    make_srd(g, srdX, P(0), 8 * 192 * 448 * 2)
    make_srd(g, srdO, P(7), 1536 * 4096 * 2)
    DIAG = os.environ.get('DIAG')
    srdD = S(68, 4)
    if DIAG:
        make_srd(g, srdD, P(6), 256)
    def stamp(idx):
        if not DIAG: return
        lab = g.newlabel('st')
        g.scmp('s_cmp_lg_u32', S(2), int(DIAG))
        g.branch('s_cbranch_scc1', lab)
        g.raw("s_memtime s[72:73]")
        g.raw("s_waitcnt lgkmcnt(0)")
        g.raw("v_mov_b32 v126, s72")
        g.raw(f"s_lshl_b32 s74, s44, 6")
        g.raw(f"s_add_u32 s74, s74, {idx*4}")
        g.raw("v_mov_b32 v127, s74")
        g.raw("buffer_store_dword v126, v127, s[68:71], 0 offen")
        g.raw("s_waitcnt vmcnt(0)") if False else None
        g.lines.append(f"{lab}:")
    vl = V(1)
    g.valu('v_and_b32', vl, 63, V(0))
    vhi, vlo31 = V(2), V(3)
    stamp(0)
    g.valu('v_lshrrev_b32', vhi, 5, vl)
    g.valu('v_and_b32', vlo31, 31, vl)
    kv = [V(32 + i) for i in range(8)]
    t0, t1, t2 = V(24), V(25), V(26)
    for i in range(8):
        g.valu('v_add_u32', t0, 2 * i, vhi)
        g.valu('v_xor_b32', t0, t0, vlo31)
        g.valu('v_lshlrev_b32', t0, 4, t0)
        g.valu('v_lshl_add_u32', kv[i], vhi, 9, t0)

    vv = [V(40 + i) for i in range(2)]
    wv = [V(42 + i) for i in range(2)]
    for i in range(2):
        g.valu('v_add_u32', t0, 2 * i, vhi)
        g.valu('v_lshlrev_b32', t0, 2, t0)
        g.valu('v_xor_b32', t0, t0, vlo31)
        g.valu('v_lshlrev_b32', t0, 4, t0)
        g.valu('v_lshl_add_u32', vv[i], vhi, 9, t0)
        g.valu('v_lshl_add_u32', wv[i], vhi, 13, t0)

    def issue_wtile(swoff, slds):
        for i in range(16):
            g.salu('s_add_u32', 'm0', slds, i * 1024)
            g.buf_dma(wv[i & 1], srdW, swoff, offset=0, flags=WFLAGS)
            g.salu('s_add_u32', swoff, swoff, 16384)

    def issue_lin(srd, voffs, soff, slds):
        for q in range(4):
            g.salu('s_add_u32', 'm0', slds, q * 4096)
            g.salu('s_add_u32', st0, soff, q * 4096)
            for i4 in range(4):
                i = q * 4 + i4
                g.buf_dma(voffs[i % len(voffs)], srd, st0, offset=i4 * 1024, flags=' nt')

    g.scmp('s_cmp_eq_u32', s_wave, 3)
    g.branch('s_cbranch_scc1', 'attn_loader')

    g.salu('s_mul_i32', st0, s_half, 96)
    g.salu('s_lshl_b32', st1, s_wave, 5)
    g.salu('s_add_u32', st0, st0, st1)
    g.salu('s_mul_i32', st1, s_b, 192)
    g.salu('s_add_u32', st0, st0, st1)
    vrow = V(4)
    g.valu('v_add_u32', vrow, st0, vlo31)
    vx = V(5)
    g.salu('s_mov_b32', st1, 896)
    g.valu('v_mul_lo_u32', vx, vrow, st1)
    g.valu('v_lshl_add_u32', vx, vhi, 4, vx)
    xf = [A(128 + 4 * i, 4) for i in range(28)]
    def xloads(lo, hi):
        for t in range(lo, hi):
            wtile_idx(S(66), t)
            g.salu('s_lshl_b32', S(66), S(66), 6)
            for s_ in range(2):
                g.buf_load('buffer_load_dwordx4', xf[2 * t + s_], vx, srdX, S(66), offset=32 * s_, flags=XFLAGS)
    xloads(0, 3)
    vo = V(6)
    g.salu('s_lshl_b32', st1, s_h, 9)
    g.valu('v_lshlrev_b32', vo, 13, vrow)
    g.valu('v_add_u32', vo, st1, vo)
    g.valu('v_lshl_add_u32', vo, vhi, 4, vo)
    kaddr = [V(8 + i) for i in range(8)]
    g.valu('v_and_b32', t1, 15, vlo31)
    for jj in range(8):
        g.valu('v_add_u32', t0, 2 * jj, vhi)
        g.valu('v_xor_b32', t0, t0, t1)
        g.valu('v_lshlrev_b32', t0, 4, t0)
        g.valu('v_lshl_add_u32', kaddr[jj], vlo31, 9, t0)
    vaddr = [V(16 + i) for i in range(4)]
    waddr = [V(20 + i) for i in range(4)]
    waddr2 = [V(44 + i) for i in range(4)]
    waddr3 = [V(48 + i) for i in range(4)]
    vrr, vcm, vdch = V(27), V(28), V(29)
    g.valu('v_lshrrev_b32', vrr, 2, vl)
    g.valu('v_and_b32', vrr, 3, vrr)
    g.valu('v_lshrrev_b32', t0, 4, vl)
    g.valu('v_and_b32', t0, 1, t0)
    g.valu('v_and_b32', vcm, 3, vl)
    g.valu('v_lshl_add_u32', vcm, t0, 2, vcm)
    perm_chunk_valu(g, vdch, vcm, t0)
    for tt in range(4):
        g.valu('v_xor_b32', t0, tt, vrr)
        g.valu('v_lshlrev_b32', t0, 6, t0)
        g.valu('v_lshl_add_u32', t0, vdch, 3, t0)
        g.valu('v_add_u32', t0, VRING, t0)
        g.valu('v_lshl_add_u32', t1, vhi, 2, vrr)
        g.valu('v_lshl_add_u32', vaddr[tt], t1, 9, t0)
        g.valu('v_lshl_add_u32', t1, vhi, 3, vrr)
        g.valu('v_lshl_add_u32', waddr[tt], t1, 9, t0)
        g.valu('v_subrev_u32', waddr[tt], VRING, waddr[tt])
        g.valu('v_add_u32', waddr2[tt], 65536, waddr[tt])
        g.valu('v_add_u32', waddr3[tt], 131072, waddr[tt])

    O = [V(128 + 16 * T, 16) for T in range(8)]
    KF = [A(4 * j, 4) for j in range(16)]
    def VFb(b):
        return [[A(64 * b + 8 * T + 4 * s, 4) for s in range(2)] for T in range(8)]
    VF = VFb(1)
    QF = [A(128 + 4 * j, 4) for j in range(16)]
    Sb = [V(32, 16), V(48, 16)]
    Pf = [V(64, 4), V(68, 4)]
    vm, vlsum, vtmax, vtm2 = V(72), V(73), V(74), V(75)

    def v_reads(addrs, slot, rowstep, VFx):
        out = []
        for T in range(8):
            for s in range(2):
                for r in range(2):
                    off = slot * TILE + (16 * s + rowstep * r) * 512 + (T >> 2) * 256
                    out.append(lambda T=T, s=s, r=r, off=off: g.ds_read(
                        'ds_read_b64_tr_b16', VFx[T][s].sub(2 * r, 2), addrs[T & 3], off))
        return out

    def k_reads(extra=0):
        return [lambda j=j: g.ds_read('ds_read_b128', KF[j], kaddr[j & 7], extra + (j >> 3) * 256)
                for j in range(16)]
    s_kslot, s_kd = S(62), S(63)
    def k_advance():
        ops = []
        ops.append(lambda: g.salu('s_add_u32', s_kslot, s_kslot, 1))
        ops.append(lambda: g.scmp('s_cmp_eq_u32', s_kslot, NKS))
        ops.append(lambda: g.ins(f"s_cselect_b32 {s_kd}, s64, {TILE}", 'salu', writes=[s_kd]))
        ops.append(lambda: g.ins(f"s_cselect_b32 {s_kslot}, 0, {s_kslot}", 'salu', reads=[s_kslot], writes=[s_kslot]))
        for jj in range(8):
            ops.append(lambda jj=jj: g.valu('v_add_u32', kaddr[jj], s_kd, kaddr[jj]))
        return ops
    g.salu('s_mov_b32', s_kslot, 0)
    g.salu('s_mov_b32', S(64), hex((-(NKS-1)*TILE) & 0xffffffff))

    def wslot(i):
        return 6 + (i & 3)
    def w_reads(i):
        sl = wslot(i)
        return v_reads([waddr, waddr2, waddr3][sl >> 2], sl & 3, 4, VFb(i & 1))
    stamp(15)
    g.barrier()
    stamp(5)
    for f in w_reads(0): f()
    for t in range(NW):
        if t > 0:
            g.barrier()
        if t in (1, 2, 3, 4, 5, 7, 9, 11, 13):
            stamp(6 + (1, 2, 3, 4, 5, 7, 9, 11, 13).index(t))
        if t + 3 < NW:
            xloads(t + 3, t + 4)
        mf = []
        for T in range(8):
            for s in range(2):
                first = (t == 0 and s == 0)
                mf.append(lambda T=T, s=s, first=first, t=t: g.mfma32(O[T], VFb(t & 1)[T][s], xf[2 * t + s], 0 if first else O[T]))
        fill = w_reads(t + 1) if t + 1 < NW else []
        interleave(g, mf, fill)
        g.wait(lgkm=0)
    for T in range(8):
        for s in range(2):
            for i in range(4):
                g.valu('v_cvt_pk_bf16_f32', V(76 + i), O[T][8 * s + 2 * i], O[T][8 * s + 2 * i + 1])
            for i in range(4):
                g.accw(QF[2 * T + s][i], V(76 + i))
    for T in range(8):
        for i in range(16):
            g.valu('v_mov_b32', O[T][i], 0)
    g.valu('v_mov_b32', vm, '0xf149f2ca')
    g.valu('v_mov_b32', vlsum, 0)

    def qk_mfmas(Sd):
        return [lambda j=j: g.mfma32(Sd, KF[j], QF[j], 0 if j == 0 else Sd) for j in range(16)]

    def max_ops(Sd):
        ops = []
        ops.append(lambda: g.valu('v_max3_f32', vtmax, Sd[0], Sd[1], Sd[2]))
        for i in range(3, 15, 2):
            ops.append(lambda i=i: g.valu('v_max3_f32', vtmax, vtmax, Sd[i], Sd[i + 1]))
        ops.append(lambda: g.valu('v_max_f32', vtmax, vtmax, Sd[15]))
        ops.append(lambda: g.valu('v_mov_b32', vtm2, vtmax))
        ops.append(lambda: g.perm32swap(vtmax, vtm2))
        ops.append(lambda: g.valu('v_max_f32', vtmax, vtmax, vtm2))
        ops.append(lambda: g.valu('v_mul_f32', vtmax, s_c, vtmax))
        ops.append(lambda: g.valu('v_sub_f32', vtm2, vtmax, vm))
        ops.append(lambda: g.vcmp('v_cmp_lt_f32', 'vcc', '0x41000000', vtm2))
        return ops

    stamp(1)
    g.barrier()
    stamp(2)
    for f in k_reads(): f()
    for f in qk_mfmas(Sb[0]): f()
    for f in k_reads(TILE): f()
    for f in k_advance(): f()
    for f in k_advance(): f()
    for f in max_ops(Sb[0]): f()
    g.wait(lgkm=0)

    def rescale_block():
        skip = g.newlabel('attn_nors')
        g.nop(4)
        g.branch('s_cbranch_vccz', skip)
        g.nop(16)
        g.valu('v_max_f32', vtmax, vtmax, vm)
        g.valu('v_sub_f32', vtm2, vm, vtmax)
        g.valu('v_exp_f32', vtm2, vtm2)
        g.valu('v_mov_b32', vm, vtmax)
        g.valu('v_mul_f32', vlsum, vlsum, vtm2)
        for T in range(8):
            for i in range(16):
                g.valu('v_mul_f32', O[T][i], O[T][i], vtm2)
        g.nop(4)
        g.label(skip)

    def iteration(t_mod4, do_qk=True, do_kread=True, vmw=None):
        cur, nxt = Sb[t_mod4 & 1], Sb[(t_mod4 + 1) & 1]
        g.wait(vm=0)
        g.barrier()
        if 'nocomp' in EXP: return
        rescale_block()
        fill = []
        vr = v_reads(vaddr, (14 + t_mod4) % 4, 8, VF)
        sm = [lambda i=i: g.valu('v_fma_f32', cur[i], cur[i], s_c, f"-{vm}") for i in range(16)]
        ex = [lambda i=i: g.valu('v_exp_f32', cur[i], cur[i]) for i in range(16)]
        ad = [lambda i=i: g.valu('v_add_f32', vlsum, vlsum, cur[i]) for i in range(16)]
        cv = [lambda i=i: g.valu('v_cvt_pk_bf16_f32', Pf[i >> 2][i & 3], cur[2 * i], cur[2 * i + 1]) for i in range(8)]
        for i in range(16 + 2):
            if i < 16:
                fill.append(vr[2 * i]); fill.append(vr[2 * i + 1])
                fill.append(sm[i])
            if 0 <= i - 1 < 16:
                fill.append(ex[i - 1])
            if 0 <= i - 2 < 16:
                fill.append(ad[i - 2])
                if (i - 2) & 1:
                    fill.append(cv[(i - 2) >> 1])
        if do_qk:
            interleave(g, qk_mfmas(nxt), fill)
        else:
            for f in fill: f()
        pv = []
        for s in range(2):
            for T in range(8):
                pv.append(lambda T=T, s=s: g.mfma32(O[T], VF[T][s], Pf[s], O[T]))
        fill = []
        if do_kread:
            fill += k_reads() + k_advance()
        if do_qk:
            fill = fill[:6] + max_ops(nxt) + fill[6:]
        interleave(g, pv, fill)
        g.wait(lgkm=0)

    s_cnt = S(51)
    g.salu('s_mov_b32', s_cnt, 0)
    g.label('attn_loop')
    for u in range(4):
        iteration(u)
    g.salu('s_add_u32', s_cnt, s_cnt, 1)
    g.scmp('s_cmp_lt_u32', s_cnt, 7)
    g.branch('s_cbranch_scc1', 'attn_loop')
    g.fence()
    iteration(0)
    iteration(1)
    iteration(2, do_kread=False)
    iteration(3, do_qk=False, do_kread=False)
    stamp(3)
    g.nop(16)
    g.valu('v_mov_b32', vtm2, vlsum)
    g.perm32swap(vlsum, vtm2)
    g.valu('v_add_f32', vlsum, vlsum, vtm2)
    g.valu('v_rcp_f32', vlsum, vlsum)
    for T in range(8):
        for i in range(16):
            g.valu('v_mul_f32', O[T][i], O[T][i], vlsum)
        for half in range(2):
            dst = V(80 + 8 * (T & 1) + 4 * half, 4)
            for i in range(4):
                g.valu('v_cvt_pk_bf16_f32', dst[i], O[T][8 * half + 2 * i], O[T][8 * half + 2 * i + 1])
            g.buf_store('buffer_store_dwordx4', dst, vo, srdO, 0, offset=T * 64 + half * 32)
    g.wait(vm=0)
    stamp(4)
    g.raw('s_endpgm')

    g.label('attn_loader')
    sKoff, sKlds, sVoff, sVlds, sWoff = S(52), S(53), S(54), S(55), S(56)
    g.salu('s_mov_b32', sKoff, s_rot)
    g.salu('s_mov_b32', sKlds, KRING)
    g.salu('s_mov_b32', sVoff, s_rot)
    g.salu('s_mov_b32', sVlds, 0)
    g.salu('s_mov_b32', S(67), 0)
    s_tl = S(59)

    def issue_k():
        issue_lin(srdK, kv, sKoff, sKlds)
        g.salu('s_add_u32', sKoff, sKoff, TILE)
        g.salu('s_and_b32', sKoff, sKoff, 0x7FFFF)
        g.salu('s_add_u32', sKlds, sKlds, TILE)
        g.scmp('s_cmp_eq_u32', sKlds, NKS * TILE)
        g.ins(f"s_cselect_b32 {sKlds}, 0, {sKlds}", 'salu', reads=[sKlds], writes=[sKlds])

    def issue_v():
        g.salu('s_add_u32', s_tl, sVlds, VRING)
        issue_lin(srdV, vv, sVoff, s_tl)
        g.salu('s_add_u32', sVoff, sVoff, TILE)
        g.salu('s_and_b32', sVoff, sVoff, 0x7FFFF)
        g.salu('s_add_u32', sVlds, sVlds, TILE)
        g.salu('s_and_b32', sVlds, sVlds, 0xFFFF)

    def issue_w(idx):
        g.salu('s_add_u32', s_tl, sVlds, VRING)
        wtile_idx(sWoff, S(67))
        g.salu('s_add_u32', S(67), S(67), 1)
        g.salu('s_lshl_b32', sWoff, sWoff, 18)
        g.salu('s_lshl_b32', S(66), s_h, 9)
        g.salu('s_add_u32', sWoff, sWoff, S(66))
        issue_wtile(sWoff, s_tl)
        g.salu('s_add_u32', sVlds, sVlds, TILE)
        g.salu('s_and_b32', sVlds, sVlds, 0xFFFF)

    def need(x):
        k, i = x
        if k == 'W': return max(i - 1, 0)
        if k == 'V': return 15 + i
        return 14 if i < 2 else 13 + i
    def consumed(x):
        k, i = x
        if k == 'W': return max(i - 1, 0)
        if k == 'V': return 15 + i
        return 14 if i < 2 else 13 + i
    items = [('W', j) for j in range(NW)] + [('V', t) for t in range(NT)] + [('K', k) for k in range(NT)]
    seq = sorted(items, key=lambda x: (need(x), {'W': 0, 'V': 1, 'K': 2}[x[0]], x[1]))
    def slot_prev(x):
        k, i = x
        if k == 'K':
            return ('K', i - NKS) if i >= NKS else None
        u = i if k == 'W' else 14 + i
        u -= 4
        if u < 0: return None
        return ('W', u) if u < 14 else ('V', u - 14)
    NEV = 15 + NT
    def qidx(j):
        return max(i for i, x in enumerate(seq) if need(x) <= j)
    sched = []
    ip = 0
    pre = []
    def can_issue(ipx, after_ev):
        x = seq[ipx]
        sp = slot_prev(x)
        if sp is not None and consumed(sp) + 1 > after_ev:
            return False
        nxt_ev = after_ev + 1
        if nxt_ev < NEV and ipx > qidx(nxt_ev) + 3:
            return False
        return True
    while ip < len(seq) and can_issue(ip, -1):
        pre.append(seq[ip]); ip += 1
    for j in range(NEV):
        n = 16 * (ip - (qidx(j) + 1))
        assert 0 <= n <= 63
        lst = []
        while ip < len(seq) and can_issue(ip, j):
            lst.append(seq[ip]); ip += 1
        sched.append((n, lst))
    assert ip == len(seq)
    if os.environ.get('SHOWSCHED'):
        print(pre); [print(j, x) for j, x in enumerate(sched)]
    def do_issue(x):
        if 'nodma' in EXP: return
        if x[0] == 'W': issue_w(x[1])
        elif x[0] == 'K': issue_k()
        else: issue_v()
    stamp(1)
    for i_, x in enumerate(pre):
        do_issue(x)
        stamp(4 + i_)
    stamp(2)
    if DIAG:
        g.wait(vm=32)
        stamp(3)
    j = 0
    s_lc = S(57)
    while j < NEV:
        n, lst = sched[j]
        kinds = [x[0] for x in lst]
        run = 1
        while j + run < NEV and sched[j + run][0] == n and [x[0] for x in sched[j + run][1]] == kinds:
            run += 1
        if run >= 4:
            lab = g.newlabel('attn_ldloop')
            g.salu('s_mov_b32', s_lc, 0)
            g.label(lab)
            g.wait(vm=n)
            g.barrier()
            for x in lst: do_issue(x)
            g.salu('s_add_u32', s_lc, s_lc, 1)
            g.scmp('s_cmp_lt_u32', s_lc, run)
            g.branch('s_cbranch_scc1', lab)
            g.fence()
            j += run
        else:
            g.wait(vm=n)
            g.barrier()
            for x in lst: do_issue(x)
            j += 1
    g.label(Lend)
    g.raw('s_endpgm')
    return kd(name, 512, 256)


def gen_oproj(g):
    name = 'oproj_kernel'
    kernel_head(g, name)
    P = lambda i: S(4 + 2 * i, 2)
    srdWo, srdO, srdOut = S(20, 4), S(24, 4), S(28, 4)
    s_rb, s_nb, s_wave, st0, st1 = S(40), S(41), S(42), S(45), S(46)
    Lend = 'oproj_end'
    SL = 28672
    g.scmp('s_cmp_ge_u32', S(2), 224)
    g.branch('s_cbranch_scc1', Lend)
    g.raw("s_load_dwordx16 s[4:19], s[0:1], 0")
    g.salu('s_lshr_b32', st1, S(2), 3)
    g.salu('s_mov_b32', st0, hex((2**32 + 6) // 7))
    g.salu('s_mul_hi_u32', s_rb, st1, st0)
    g.salu('s_mul_i32', st0, s_rb, 7)
    g.salu('s_sub_u32', s_nb, st1, st0)
    g.salu('s_and_b32', st0, S(2), 7)
    g.salu('s_lshl_b32', st0, st0, 2)
    g.salu('s_add_u32', s_rb, s_rb, st0)
    g.salu('s_mul_i32', s_rb, s_rb, 48)
    g.valu('v_lshrrev_b32', V(1), 6, V(0))
    g.readfirstlane(s_wave, V(1))
    g.wait(lgkm=0)
    make_srd(g, srdWo, P(4), 4096 * 448 * 2)
    make_srd(g, srdO, P(7), 1536 * 4096 * 2)
    make_srd(g, srdOut, P(5), 1536 * 448 * 2)
    DIAG = os.environ.get('DIAG')
    if DIAG:
        make_srd(g, S(68, 4), P(6), 256)
    def stamp(idx):
        if not DIAG: return
        lab = g.newlabel('st')
        g.scmp('s_cmp_lg_u32', S(2), int(DIAG))
        g.branch('s_cbranch_scc1', lab)
        g.raw("s_memtime s[72:73]")
        g.raw("s_waitcnt lgkmcnt(0)")
        g.raw("v_mov_b32 v126, s72")
        g.raw(f"s_lshl_b32 s74, s42, 6")
        g.raw(f"s_add_u32 s74, s74, {idx*4}")
        g.raw("v_mov_b32 v127, s74")
        g.raw("buffer_store_dword v126, v127, s[68:71], 0 offen")
        g.lines.append(f"{lab}:")
    vl = V(1)
    g.valu('v_and_b32', vl, 63, V(0))
    stamp(0)
    t0, t1, t2 = V(24), V(25), V(26)
    vO = [V(2 + j) for j in range(3)]
    vW = [V(5 + j) for j in range(4)]
    g.valu('v_lshrrev_b32', t0, 4, vl)
    g.valu('v_and_b32', t1, 15, vl)
    g.salu('s_mul_i32', st0, s_wave, 12)
    for j in range(3):
        g.valu('v_add_u32', t2, st0, t0)
        g.valu('v_add_u32', t2, 4 * j, t2)
        g.valu('v_and_b32', vO[j], 15, t2)
        g.valu('v_xor_b32', vO[j], vO[j], t1)
        g.valu('v_lshlrev_b32', vO[j], 4, vO[j])
        g.valu('v_add_u32', t2, s_rb, t2)
        g.valu('v_lshl_add_u32', vO[j], t2, 13, vO[j])
    g.valu('v_lshrrev_b32', t0, 3, vl)
    g.valu('v_and_b32', t1, 7, vl)
    g.valu('v_lshrrev_b32', t2, 1, t0)
    g.valu('v_and_b32', t2, 1, t2)
    g.salu('s_lshl_b32', st0, s_wave, 5)
    g.salu('s_mov_b32', st1, 896)
    for j in range(4):
        g.valu('v_or_b32', vW[j], (j & 1) << 1, t2)
        g.valu('v_lshlrev_b32', vW[j], 1, vW[j])
        g.valu('v_xor_b32', vW[j], vW[j], t1)
        g.valu('v_lshlrev_b32', vW[j], 4, vW[j])
        g.valu('v_add_u32', V(27), st0, t0)
        g.valu('v_add_u32', V(27), 8 * j, V(27))
        g.valu('v_mul_lo_u32', V(27), V(27), st1)
        g.valu('v_add_u32', vW[j], vW[j], V(27))
    g.salu('s_lshl_b32', st0, s_nb, 7)
    for j in range(4):
        g.valu('v_add_u32', vW[j], st0, vW[j])
    vB = [V(10 + ks) for ks in range(4)]
    vA = V(14)
    g.valu('v_and_b32', t0, 15, vl)
    g.valu('v_lshrrev_b32', t1, 4, vl)
    for ks in range(4):
        g.valu('v_add_u32', t2, 4 * ks, t1)
        g.valu('v_xor_b32', t2, t2, t0)
        g.valu('v_lshlrev_b32', t2, 4, t2)
        g.valu('v_lshl_add_u32', vB[ks], t0, 8, t2)
    vrr = V(27)
    g.valu('v_lshrrev_b32', vrr, 2, vl)
    g.valu('v_and_b32', vrr, 3, vrr)
    g.valu('v_lshrrev_b32', t2, 1, vrr)
    g.valu('v_and_b32', t0, 1, t1)
    g.valu('v_lshl_or_b32', t2, t0, 1, t2)
    g.valu('v_xor_b32', t2, s_wave, t2)
    g.valu('v_lshlrev_b32', t2, 5, t2)
    g.valu('v_and_b32', t0, 3, vl)
    g.valu('v_lshl_add_u32', t2, t0, 3, t2)
    g.valu('v_lshl_add_u32', t0, t1, 3, vrr)
    g.valu('v_lshl_add_u32', vA, t0, 7, t2)
    g.valu('v_add_u32', vA, 12288, vA)
    NSL = 5
    vBs = [vB, [V(112 + ks) for ks in range(4)], [V(118 + ks) for ks in range(4)]]
    vAs = [vA, V(116), V(122)]
    for q in (1, 2):
        for ks in range(4):
            g.valu('v_add_u32', vBs[q][ks], 2 * q * SL, vB[ks])
        g.valu('v_add_u32', vAs[q], 2 * q * SL, vA)
    vout = V(15)
    g.valu('v_and_b32', t0, 15, vl)
    g.valu('v_add_u32', t0, s_rb, t0)
    g.valu('v_mul_lo_u32', vout, t0, st1)
    g.salu('s_lshl_b32', st0, s_nb, 7)
    g.salu('s_lshl_b32', S(47), s_wave, 5)
    g.salu('s_add_u32', st0, st0, S(47))
    g.valu('v_add_u32', vout, st0, vout)
    g.valu('v_lshl_add_u32', vout, t1, 3, vout)
    acc = [V(32 + 4 * rt, 4) for rt in range(3)]
    BF = [[V(48 + 16 * rt + 4 * ks, 4) for ks in range(4)] for rt in range(3)]
    AF = [V(96 + 4 * ks, 4) for ks in range(4)]
    for rt in range(3):
        for i in range(4):
            g.valu('v_mov_b32', acc[rt][i], 0)
    s_ko, s_kw = S(50), S(51)
    g.salu('s_lshr_b32', st0, S(2), 3)
    g.salu('s_and_b32', st0, st0, 7)
    g.salu('s_lshl_b32', s_ko, st0, 8)
    g.salu('s_mul_i32', s_kw, st0, 128 * 896)
    s_mo, s_mw = S(52), S(53)
    g.salu('s_mul_i32', s_mo, s_wave, 3072)
    g.salu('s_lshl_b32', s_mw, s_wave, 12)
    g.salu('s_add_u32', s_mw, s_mw, 12288)

    def issue(slot):
        for j in range(3):
            g.salu('s_add_u32', 'm0', s_mo, slot * SL + j * 1024)
            g.buf_dma(vO[j], srdO, s_ko, offset=0)
        for j in range(4):
            g.salu('s_add_u32', 'm0', s_mw, slot * SL + j * 1024)
            g.buf_dma(vW[j], srdWo, s_kw, offset=0)
        g.salu('s_add_u32', s_ko, s_ko, 256)
        g.salu('s_add_u32', s_kw, s_kw, 128 * 896)
        g.scmp('s_cmp_eq_u32', s_ko, 8192)
        g.ins(f"s_cselect_b32 {s_ko}, 0, {s_ko}", 'salu', reads=[s_ko], writes=[s_ko])
        g.ins(f"s_cselect_b32 {s_kw}, 0, {s_kw}", 'salu', reads=[s_kw], writes=[s_kw])

    def step(slot, vmwait, do_issue):
        g.wait(vm=vmwait)
        g.barrier()
        if do_issue:
            issue((slot + NSL - 1) % NSL)
        for ks in range(4):
            for r in range(2):
                g.ds_read('ds_read_b64_tr_b16', AF[ks].sub(2 * r, 2), vAs[slot >> 1], (slot & 1) * SL + (32 * ks + 4 * r) * 128)
            for rt in range(3):
                g.ds_read('ds_read_b128', BF[rt][ks], vBs[slot >> 1][ks], (slot & 1) * SL + rt * 4096)
        for ks in range(4):
            for rt in range(3):
                g.mfma16(acc[rt], AF[ks], BF[rt][ks], acc[rt])
        g.wait(lgkm=0)

    for sl in range(NSL - 1):
        issue(sl)
    s_it = S(54)
    stamp(1)
    g.salu('s_mov_b32', s_it, 0)
    g.label('oproj_loop')
    for sl in range(NSL):
        step(sl, 7 * (NSL - 2), True)
    g.salu('s_add_u32', s_it, s_it, 1)
    g.scmp('s_cmp_lt_u32', s_it, 5)
    g.branch('s_cbranch_scc1', 'oproj_loop')
    g.fence()
    stamp(3)
    for c in range(25, 32):
        rem = min(31, c + NSL - 2) - c
        step(c % NSL, 7 * rem, c + NSL - 1 <= 31)
    stamp(4)
    g.nop(10)
    for rt in range(3):
        dst = V(104 + 2 * rt, 2)
        g.valu('v_cvt_pk_bf16_f32', dst[0], acc[rt][0], acc[rt][1])
        g.valu('v_cvt_pk_bf16_f32', dst[1], acc[rt][2], acc[rt][3])
        g.salu('s_mov_b32', st0, rt * 16 * 896)
        g.buf_store('buffer_store_dwordx2', dst, vout, srdOut, st0, offset=0)
    g.label(Lend)
    g.raw('s_endpgm')
    return kd(name, 128, 128)


def main():
    out = HEADER
    out += "; @launch kernel=attn_kernel grid=(256,1,1) block=(256,1,1) lds=163840\n"
    out += "; @launch kernel=oproj_kernel grid=(224,1,1) block=(256,1,1) lds=143360\n"
    out += '.amdgcn_target "amdgcn-amd-amdhsa--gfx950"\n.text\n'
    g = Gen(); k1 = gen_attn(g); out += g.text() + k1
    g = Gen(); g.nlabel = 1000; k2 = gen_oproj(g); out += g.text() + k2
    open(os.environ.get('OUT', 'standalone__mha_block_cached__near_ridge.s'), 'w').write(out)

if __name__ == "__main__":
    main()
```

```python
import sys, math
sys.path.insert(0, 'gen')
from asmgen import *

HEADER = """; Kernarg layout for this problem (64 bytes, ptrs only, base s[0:1]):
"""

def kd(name, vgpr, acc_off, sgpr=102):
    return f""".section .rodata,"a"
.p2align 6
.amdhsa_kernel {name}
  .amdhsa_next_free_vgpr {vgpr}
  .amdhsa_next_free_sgpr {sgpr}
  .amdhsa_accum_offset {acc_off}
  .amdhsa_group_segment_fixed_size 0
  .amdhsa_kernarg_size 64
  .amdhsa_user_sgpr_count 2
  .amdhsa_user_sgpr_kernarg_segment_ptr 1
  .amdhsa_system_sgpr_workgroup_id_x 1
.end_amdhsa_kernel
.text
"""

def kernel_head(g, name):
    g.lines.append(f".globl {name}")
    g.lines.append(".p2align 8")
    g.lines.append(f".type {name},@function")
    g.lines.append(f"{name}:")
    g.fence()

def make_srd(g, srd, ptr, nbytes, add_lo=None):
    if add_lo is None:
        g.salu('s_mov_b32', srd[0], ptr[0])
        g.salu('s_mov_b32', srd[1], ptr[1])
    else:
        g.salu('s_add_u32', srd[0], ptr[0], add_lo)
        g.salu('s_addc_u32', srd[1], ptr[1], 0)
    g.salu('s_mov_b32', srd[2], hex(nbytes))
    g.salu('s_mov_b32', srd[3], '0x00020000')

def perm_chunk_valu(g, dst, cm, tmp):
    g.valu('v_and_b32', dst, 4, cm)
    g.valu('v_and_b32', tmp, 1, cm)
    g.valu('v_lshlrev_b32', tmp, 1, tmp)
    g.valu('v_or_b32', dst, dst, tmp)
    g.valu('v_lshrrev_b32', tmp, 1, cm)
    g.valu('v_and_b32', tmp, 1, tmp)
    g.valu('v_or_b32', dst, dst, tmp)

import os
EXP = os.environ.get('EXP', '')
WFLAGS = os.environ.get('WFLAGS', '')
XFLAGS = os.environ.get('XFLAGS', '')
NT = 32
NW = 14
KRING = 0
NKS = 6
VRING = 98304
TILE = 16384
WOT = 28672
WO_SLOT = [2 * WOT, 0, WOT, VRING, VRING + WOT, 2 * WOT, 0, WOT]

def interleave(g, mf, fill):
    n = len(mf)
    k = 0
    for i, m in enumerate(mf):
        m()
        upto = (len(fill) * (i + 1)) // n
        while k < upto:
            fill[k]()
            k += 1

def gen_attn(g):
    import struct
    name = 'attn_kernel'
    kernel_head(g, name)
    P = lambda i: S(4 + 2 * i, 2)
    srdK, srdV, srdW, srdX, srdO = S(20, 4), S(24, 4), S(28, 4), S(32, 4), S(36, 4)
    s_bh, s_half, s_b, s_h, s_wave = S(40), S(41), S(42), S(43), S(44)
    st0, st1 = S(45), S(46)
    s_c = S(50)
    s_rot = S(58)
    Lend = 'attn_end'
    g.scmp('s_cmp_ge_u32', S(2), 256)
    g.branch('s_cbranch_scc1', Lend)
    g.raw("s_load_dwordx16 s[4:19], s[0:1], 0")
    g.salu('s_lshr_b32', st0, S(2), 4)
    g.salu('s_lshl_b32', st0, st0, 3)
    g.salu('s_and_b32', st1, S(2), 7)
    g.salu('s_add_u32', s_bh, st0, st1)
    g.salu('s_lshr_b32', st0, S(2), 3)
    g.salu('s_and_b32', s_half, st0, 1)
    g.salu('s_lshr_b32', s_b, s_bh, 4)
    g.salu('s_and_b32', s_h, s_bh, 15)
    g.valu('v_lshrrev_b32', V(1), 6, V(0))
    g.readfirstlane(s_wave, V(1))
    cval = struct.unpack('<I', struct.pack('<f', math.log2(math.e) / 16.0))[0]
    g.salu('s_mov_b32', s_c, hex(cval))
    g.salu('s_mul_i32', s_rot, s_bh, 11)
    g.salu('s_and_b32', s_rot, s_rot, 31)
    g.salu('s_lshl_b32', s_rot, s_rot, 14)
    s_wrot = S(65)
    g.salu('s_lshl_b32', s_wrot, s_b, 1)
    g.salu('s_add_u32', s_wrot, s_wrot, s_half)
    g.scmp('s_cmp_ge_u32', s_wrot, 14)
    g.ins(f"s_cselect_b32 {st0}, 14, 0", 'salu', writes=[st0])
    g.salu('s_sub_u32', s_wrot, s_wrot, st0)
    def wtile_idx(dst, pos):
        g.salu('s_add_u32', dst, s_wrot, pos)
        g.scmp('s_cmp_ge_u32', dst, 14)
        g.ins(f"s_cselect_b32 {st1}, 14, 0", 'salu', writes=[st1])
        g.salu('s_sub_u32', dst, dst, st1)
    g.wait(lgkm=0)
    g.salu('s_lshl_b32', st0, s_bh, 19)
    make_srd(g, srdK, P(1), 524288, st0)
    make_srd(g, srdV, P(2), 524288, st0)
    make_srd(g, srdW, P(3), 448 * 4096 * 2)
    make_srd(g, srdX, P(0), 8 * 192 * 448 * 2)
    make_srd(g, srdO, P(7), 16 * 1536 * 448 * 2)
    srdWo = S(76, 4)
    g.salu('s_mul_i32', st0, s_h, 256 * 896)
    make_srd(g, srdWo, P(4), 256 * 896, st0)
    DIAG = os.environ.get('DIAG')
    srdD = S(68, 4)
    if DIAG:
        make_srd(g, srdD, P(6), 256)
    def stamp(idx):
        if not DIAG: return
        lab = g.newlabel('st')
        g.scmp('s_cmp_lg_u32', S(2), int(DIAG))
        g.branch('s_cbranch_scc1', lab)
        g.raw("s_memtime s[72:73]")
        g.raw("s_waitcnt lgkmcnt(0)")
        g.raw("v_mov_b32 v126, s72")
        g.raw(f"s_lshl_b32 s74, s44, 6")
        g.raw(f"s_add_u32 s74, s74, {idx*4}")
        g.raw("v_mov_b32 v127, s74")
        g.raw("buffer_store_dword v126, v127, s[68:71], 0 offen")
        g.raw("s_waitcnt vmcnt(0)") if False else None
        g.lines.append(f"{lab}:")
    vl = V(1)
    g.valu('v_and_b32', vl, 63, V(0))
    vhi, vlo31 = V(2), V(3)
    stamp(0)
    g.valu('v_lshrrev_b32', vhi, 5, vl)
    g.valu('v_and_b32', vlo31, 31, vl)
    kv = [V(32 + i) for i in range(8)]
    t0, t1, t2 = V(24), V(25), V(26)
    for i in range(8):
        g.valu('v_add_u32', t0, 2 * i, vhi)
        g.valu('v_xor_b32', t0, t0, vlo31)
        g.valu('v_lshlrev_b32', t0, 4, t0)
        g.valu('v_lshl_add_u32', kv[i], vhi, 9, t0)

    vv = [V(40 + i) for i in range(2)]
    wv = [V(42 + i) for i in range(2)]
    for i in range(2):
        g.valu('v_add_u32', t0, 2 * i, vhi)
        g.valu('v_lshlrev_b32', t0, 2, t0)
        g.valu('v_xor_b32', t0, t0, vlo31)
        g.valu('v_lshlrev_b32', t0, 4, t0)
        g.valu('v_lshl_add_u32', vv[i], vhi, 9, t0)
        g.valu('v_lshl_add_u32', wv[i], vhi, 13, t0)

    def issue_wtile(swoff, slds):
        for i in range(16):
            g.salu('s_add_u32', 'm0', slds, i * 1024)
            g.buf_dma(wv[i & 1], srdW, swoff, offset=0, flags=WFLAGS)
            g.salu('s_add_u32', swoff, swoff, 16384)

    def issue_lin(srd, voffs, soff, slds):
        for q in range(4):
            g.salu('s_add_u32', 'm0', slds, q * 4096)
            g.salu('s_add_u32', st0, soff, q * 4096)
            for i4 in range(4):
                i = q * 4 + i4
                g.buf_dma(voffs[i % len(voffs)], srd, st0, offset=i4 * 1024, flags=' nt')

    g.scmp('s_cmp_eq_u32', s_wave, 3)
    g.branch('s_cbranch_scc1', 'attn_loader')

    g.salu('s_mul_i32', st0, s_half, 96)
    g.salu('s_lshl_b32', st1, s_wave, 5)
    g.salu('s_add_u32', st0, st0, st1)
    g.salu('s_mul_i32', st1, s_b, 192)
    g.salu('s_add_u32', st0, st0, st1)
    vrow = V(4)
    g.valu('v_add_u32', vrow, st0, vlo31)
    vx = V(5)
    g.salu('s_mov_b32', st1, 896)
    g.valu('v_mul_lo_u32', vx, vrow, st1)
    g.valu('v_lshl_add_u32', vx, vhi, 4, vx)
    xf = [A(128 + 4 * i, 4) for i in range(28)]
    def xloads(lo, hi):
        for t in range(lo, hi):
            wtile_idx(S(66), t)
            g.salu('s_lshl_b32', S(66), S(66), 6)
            for s_ in range(2):
                g.buf_load('buffer_load_dwordx4', xf[2 * t + s_], vx, srdX, S(66), offset=32 * s_, flags=XFLAGS)
    xloads(0, 3)
    vo = V(6)
    g.salu('s_lshl_b32', st1, s_h, 9)
    g.valu('v_lshlrev_b32', vo, 13, vrow)
    g.valu('v_add_u32', vo, st1, vo)
    g.valu('v_lshl_add_u32', vo, vhi, 4, vo)
    kaddr = [V(8 + i) for i in range(8)]
    g.valu('v_and_b32', t1, 15, vlo31)
    for jj in range(8):
        g.valu('v_add_u32', t0, 2 * jj, vhi)
        g.valu('v_xor_b32', t0, t0, t1)
        g.valu('v_lshlrev_b32', t0, 4, t0)
        g.valu('v_lshl_add_u32', kaddr[jj], vlo31, 9, t0)
    vaddr = [V(16 + i) for i in range(4)]
    waddr = [V(20 + i) for i in range(4)]
    waddr2 = [V(44 + i) for i in range(4)]
    waddr3 = [V(48 + i) for i in range(4)]
    vrr, vcm, vdch = V(27), V(28), V(29)
    g.valu('v_lshrrev_b32', vrr, 2, vl)
    g.valu('v_and_b32', vrr, 3, vrr)
    g.valu('v_lshrrev_b32', t0, 4, vl)
    g.valu('v_and_b32', t0, 1, t0)
    g.valu('v_and_b32', vcm, 3, vl)
    g.valu('v_lshl_add_u32', vcm, t0, 2, vcm)
    perm_chunk_valu(g, vdch, vcm, t0)
    for tt in range(4):
        g.valu('v_xor_b32', t0, tt, vrr)
        g.valu('v_lshlrev_b32', t0, 6, t0)
        g.valu('v_lshl_add_u32', t0, vdch, 3, t0)
        g.valu('v_add_u32', t0, VRING, t0)
        g.valu('v_lshl_add_u32', t1, vhi, 2, vrr)
        g.valu('v_lshl_add_u32', vaddr[tt], t1, 9, t0)
        g.valu('v_lshl_add_u32', t1, vhi, 3, vrr)
        g.valu('v_lshl_add_u32', waddr[tt], t1, 9, t0)
        g.valu('v_subrev_u32', waddr[tt], VRING, waddr[tt])
        g.valu('v_add_u32', waddr2[tt], 65536, waddr[tt])
        g.valu('v_add_u32', waddr3[tt], 131072, waddr[tt])

    O = [V(128 + 16 * T, 16) for T in range(8)]
    KF = [A(4 * j, 4) for j in range(16)]
    def VFb(b):
        return [[A(64 * b + 8 * T + 4 * s, 4) for s in range(2)] for T in range(8)]
    VF = VFb(1)
    QF = [A(128 + 4 * j, 4) for j in range(16)]
    Sb = [V(32, 16), V(48, 16)]
    Pf = [V(64, 4), V(68, 4)]
    vm, vlsum, vtmax, vtm2 = V(72), V(73), V(74), V(75)

    def v_reads(addrs, slot, rowstep, VFx):
        out = []
        for T in range(8):
            for s in range(2):
                for r in range(2):
                    off = slot * TILE + (16 * s + rowstep * r) * 512 + (T >> 2) * 256
                    out.append(lambda T=T, s=s, r=r, off=off: g.ds_read(
                        'ds_read_b64_tr_b16', VFx[T][s].sub(2 * r, 2), addrs[T & 3], off))
        return out

    def k_reads(extra=0):
        return [lambda j=j: g.ds_read('ds_read_b128', KF[j], kaddr[j & 7], extra + (j >> 3) * 256)
                for j in range(16)]
    s_kslot, s_kd = S(62), S(63)
    def k_advance():
        ops = []
        ops.append(lambda: g.salu('s_add_u32', s_kslot, s_kslot, 1))
        ops.append(lambda: g.scmp('s_cmp_eq_u32', s_kslot, NKS))
        ops.append(lambda: g.ins(f"s_cselect_b32 {s_kd}, s64, {TILE}", 'salu', writes=[s_kd]))
        ops.append(lambda: g.ins(f"s_cselect_b32 {s_kslot}, 0, {s_kslot}", 'salu', reads=[s_kslot], writes=[s_kslot]))
        for jj in range(8):
            ops.append(lambda jj=jj: g.valu('v_add_u32', kaddr[jj], s_kd, kaddr[jj]))
        return ops
    g.salu('s_mov_b32', s_kslot, 0)
    g.salu('s_mov_b32', S(64), hex((-(NKS-1)*TILE) & 0xffffffff))

    def wslot(i):
        return 6 + (i & 3)
    def w_reads(i):
        sl = wslot(i)
        return v_reads([waddr, waddr2, waddr3][sl >> 2], sl & 3, 4, VFb(i & 1))
    g.barrier()
    for f in w_reads(0): f()
    for t in range(NW):
        if t > 0:
            g.barrier()
        if t + 3 < NW:
            xloads(t + 3, t + 4)
        mf = []
        for T in range(8):
            for s in range(2):
                first = (t == 0 and s == 0)
                mf.append(lambda T=T, s=s, first=first, t=t: g.mfma32(O[T], VFb(t & 1)[T][s], xf[2 * t + s], 0 if first else O[T]))
        fill = w_reads(t + 1) if t + 1 < NW else []
        interleave(g, mf, fill)
        g.wait(lgkm=0)
    for T in range(8):
        for s in range(2):
            for i in range(4):
                g.valu('v_cvt_pk_bf16_f32', V(76 + i), O[T][8 * s + 2 * i], O[T][8 * s + 2 * i + 1])
            for i in range(4):
                g.accw(QF[2 * T + s][i], V(76 + i))
    for T in range(8):
        for i in range(16):
            g.valu('v_mov_b32', O[T][i], 0)
    g.valu('v_mov_b32', vm, '0xf149f2ca')
    g.valu('v_mov_b32', vlsum, 0)

    def qk_mfmas(Sd):
        return [lambda j=j: g.mfma32(Sd, KF[j], QF[j], 0 if j == 0 else Sd) for j in range(16)]

    def max_ops(Sd):
        ops = []
        ops.append(lambda: g.valu('v_max3_f32', vtmax, Sd[0], Sd[1], Sd[2]))
        for i in range(3, 15, 2):
            ops.append(lambda i=i: g.valu('v_max3_f32', vtmax, vtmax, Sd[i], Sd[i + 1]))
        ops.append(lambda: g.valu('v_max_f32', vtmax, vtmax, Sd[15]))
        ops.append(lambda: g.valu('v_mov_b32', vtm2, vtmax))
        ops.append(lambda: g.perm32swap(vtmax, vtm2))
        ops.append(lambda: g.valu('v_max_f32', vtmax, vtmax, vtm2))
        ops.append(lambda: g.valu('v_mul_f32', vtmax, s_c, vtmax))
        ops.append(lambda: g.valu('v_sub_f32', vtm2, vtmax, vm))
        ops.append(lambda: g.vcmp('v_cmp_lt_f32', 'vcc', '0x41000000', vtm2))
        return ops

    stamp(1)
    g.barrier()
    for f in k_reads(): f()
    for f in qk_mfmas(Sb[0]): f()
    for f in k_reads(TILE): f()
    for f in k_advance(): f()
    for f in k_advance(): f()
    for f in max_ops(Sb[0]): f()
    PRELOOP_HOOK = len(g.lines)

    def rescale_block():
        skip = g.newlabel('attn_nors')
        g.nop(4)
        g.branch('s_cbranch_vccz', skip)
        g.nop(16)
        g.valu('v_max_f32', vtmax, vtmax, vm)
        g.valu('v_sub_f32', vtm2, vm, vtmax)
        g.valu('v_exp_f32', vtm2, vtm2)
        g.valu('v_mov_b32', vm, vtmax)
        g.valu('v_mul_f32', vlsum, vlsum, vtm2)
        for T in range(8):
            for i in range(16):
                g.valu('v_mul_f32', O[T][i], O[T][i], vtm2)
        g.nop(4)
        g.label(skip)

    def v_reads_s(slot, s_):
        out = []
        for T in range(8):
            for r in range(2):
                off = slot * TILE + (16 * s_ + 8 * r) * 512 + (T >> 2) * 256
                out.append(lambda T=T, r=r, off=off: g.ds_read(
                    'ds_read_b64_tr_b16', VF[T][s_].sub(2 * r, 2), vaddr[T & 3], off))
        return out

    def softmax_ops(cur, lo, hi):
        ops = []
        for i in range(lo, hi + 2):
            if i < hi:
                ops.append(lambda i=i: g.valu('v_fma_f32', cur[i], cur[i], s_c, f"-{vm}"))
            if lo <= i - 1 < hi:
                ops.append(lambda i=i: g.valu('v_exp_f32', cur[i - 1], cur[i - 1]))
            if lo <= i - 2 < hi:
                ops.append(lambda i=i: g.valu('v_add_f32', vlsum, vlsum, cur[i - 2]))
                if (i - 2) & 1:
                    j = (i - 2) >> 1
                    ops.append(lambda j=j: g.valu('v_cvt_pk_bf16_f32', Pf[j >> 2][j & 3], cur[2 * j], cur[2 * j + 1]))
        return ops

    def mix(a_, b_):
        out = []
        na, nb = len(a_), len(b_)
        ia = ib = 0
        while ia < na or ib < nb:
            if ib >= nb or (ia < na and ia * nb <= ib * na):
                out.append(a_[ia]); ia += 1
            else:
                out.append(b_[ib]); ib += 1
        return out

    def iteration(t_mod4, do_qk=True, do_kread=True, do_vnext=True):
        cur, nxt = Sb[t_mod4 & 1], Sb[(t_mod4 + 1) & 1]
        g.wait(vm=0)
        if 'nobar' not in EXP: g.barrier()
        if 'nocomp' in EXP: return
        vs1 = v_reads_s((14 + t_mod4) % 4, 1)
        vn0 = v_reads_s((15 + t_mod4) % 4, 0) if do_vnext else []
        kr = k_reads() if do_kread else []
        qk = qk_mfmas(nxt) if do_qk else []
        pv = [[(lambda T=T, s_=s_: g.mfma32(O[T], VF[T][s_], Pf[s_], O[T])) for T in range(8)] for s_ in range(2)]
        if 'nolds' in EXP:
            vs1 = []; vn0 = []; kr = []
        if 'nosm' in EXP:
            softmax_ops_ = lambda *a: []
        else:
            softmax_ops_ = softmax_ops
        fa = mix(softmax_ops_(cur, 0, 8), vs1[:4])
        fb = mix(softmax_ops_(cur, 8, 12), vs1[4:] + kr[:6])
        fc = mix(softmax_ops_(cur, 12, 16), kr[6:8] + vn0)
        fd = kr[8:] + (k_advance() if do_kread else [])
        if do_qk:
            fd = fd[:5] + mix(max_ops(nxt), fd[5:])
        if do_qk:
            interleave(g, qk[:8], fa)
        else:
            for f in fa: f()
        interleave(g, pv[0], fb)
        if do_qk:
            interleave(g, qk[8:], fc)
        else:
            for f in fc: f()
        interleave(g, pv[1], fd)
        if do_qk:
            rescale_block()
        g.wait(lgkm=0)

    for f in v_reads_s(14 % 4, 0): f()
    rescale_block()
    g.wait(lgkm=0)
    s_cnt = S(51)
    g.salu('s_mov_b32', s_cnt, 0)
    g.label('attn_loop')
    for u in range(4):
        iteration(u)
    g.salu('s_add_u32', s_cnt, s_cnt, 1)
    g.scmp('s_cmp_lt_u32', s_cnt, 7)
    g.branch('s_cbranch_scc1', 'attn_loop')
    g.fence()
    iteration(0)
    iteration(1)
    iteration(2, do_kread=False)
    iteration(3, do_qk=False, do_kread=False, do_vnext=False)
    stamp(3)
    g.nop(16)
    g.valu('v_mov_b32', vtm2, vlsum)
    g.perm32swap(vlsum, vtm2)
    g.valu('v_add_f32', vlsum, vlsum, vtm2)
    g.valu('v_rcp_f32', vlsum, vlsum)
    OF = QF
    for T in range(8):
        for i in range(16):
            g.valu('v_mul_f32', O[T][i], O[T][i], vlsum)
        for s_ in range(2):
            for i in range(4):
                g.valu('v_cvt_pk_bf16_f32', V(76 + i), O[T][8 * s_ + 2 * i], O[T][8 * s_ + 2 * i + 1])
            for i in range(4):
                g.accw(OF[2 * T + s_][i], V(76 + i))
    wbe, wbo, wae, wao = V(8), V(9), V(10), V(11)
    g.valu('v_lshl_add_u32', t0, vhi, 3, vrr)
    g.salu('s_mov_b32', st1, 896)
    g.valu('v_mul_lo_u32', t0, t0, st1)
    g.valu('v_lshl_add_u32', t0, vdch, 3, t0)
    g.valu('v_lshrrev_b32', t1, 1, vrr)
    g.valu('v_lshlrev_b32', t1, 6, t1)
    g.valu('v_add_u32', wbe, t0, t1)
    g.valu('v_sub_u32', wbo, t0, t1)
    vpo = V(12)
    g.salu('s_mul_i32', st0, s_h, 48)
    g.salu('s_mul_i32', st1, s_b, 6)
    g.salu('s_add_u32', st0, st0, st1)
    g.salu('s_mul_i32', st1, s_half, 3)
    g.salu('s_add_u32', st0, st0, st1)
    g.salu('s_add_u32', st0, st0, s_wave)
    g.salu('s_mul_i32', st0, st0, 28672)
    g.valu('v_lshlrev_b32', vpo, 4, vl)
    g.valu('v_add_u32', vpo, st0, vpo)
    ACC = [V(32 + 16 * nt, 16) for nt in range(14)]
    def WFb(bf):
        return [[A(64 * bf + 8 * q + 4 * s_, 4) for s_ in range(2)] for q in range(7)]
    def wo_reads(half):
        out = []
        for q in range(7):
            nt = 7 * half + q
            for s_ in range(2):
                for r in range(2):
                    out.append(lambda q=q, nt=nt, s_=s_, r=r: g.ds_read('ds_read_b64_tr_b16', WFb(half)[q][s_].sub(2 * r, 2),
                               wao if nt & 1 else wae, (16 * s_ + 4 * r) * 896 + nt * 64))
        return out
    def wo_mfmas(half, u):
        out = []
        for s_ in range(2):
            for q in range(7):
                nt = 7 * half + q
                first = (u == 0 and s_ == 0)
                out.append(lambda q=q, nt=nt, s_=s_, first=first: g.mfma32(ACC[nt], WFb(half)[q][s_], OF[2 * u + s_], 0 if first else ACC[nt]))
        return out
    for u in range(8):
        g.barrier()
        g.valu('v_add_u32', wae, WO_SLOT[u], wbe)
        g.valu('v_add_u32', wao, WO_SLOT[u], wbo)
        for f in wo_reads(0): f()
        interleave(g, wo_mfmas(0, u), wo_reads(1))
        for f in wo_mfmas(1, u): f()
        g.wait(lgkm=0)
    stamp(2)
    g.nop(12)
    for nt in range(14):
        if nt % 2 == 0:
            g.salu('s_mov_b32', st0, (nt // 2) * 4096)
        for q in range(2):
            dst = V(16 + 4 * ((2 * nt + q) & 1), 4)
            for i in range(4):
                g.valu('v_cvt_pk_bf16_f32', dst[i], ACC[nt][8 * q + 2 * i], ACC[nt][8 * q + 2 * i + 1])
            g.buf_store('buffer_store_dwordx4', dst, vpo, srdO, st0, offset=((nt & 1) * 2 + q) * 1024)
    if DIAG:
        g.wait(vm=0)
    stamp(4)
    g.raw('s_endpgm')

    g.label('attn_loader')
    ov = [V(48 + i) for i in range(7)]
    g.salu('s_mov_b32', st0, hex((2**32 + 55) // 56))
    g.salu('s_mov_b32', st1, 56)
    for i in range(7):
        g.valu('v_add_u32', t0, 64 * i, vl)
        g.valu('v_mul_hi_u32', t1, t0, st0)
        g.valu('v_mul_lo_u32', t2, t1, st1)
        g.valu('v_sub_u32', t0, t0, t2)
        g.valu('v_lshrrev_b32', t2, 1, t1)
        g.valu('v_and_b32', t2, 1, t2)
        g.valu('v_lshlrev_b32', t2, 2, t2)
        g.valu('v_xor_b32', t0, t0, t2)
        g.valu('v_lshlrev_b32', t0, 4, t0)
        g.valu('v_mul_u32_u24', t1, 896, t1)
        g.valu('v_add_u32', ov[i], t0, t1)
    def issue_wo(u):
        for i in range(28):
            g.salu('s_mov_b32', 'm0', WO_SLOT[u] + i * 1024)
            g.salu('s_mov_b32', st0, u * WOT + (i // 7) * 7168)
            g.buf_dma(ov[i % 7], srdWo, st0, offset=0)
    sKoff, sKlds, sVoff, sVlds, sWoff = S(52), S(53), S(54), S(55), S(56)
    g.salu('s_mov_b32', sKoff, s_rot)
    g.salu('s_mov_b32', sKlds, KRING)
    g.salu('s_mov_b32', sVoff, s_rot)
    g.salu('s_mov_b32', sVlds, 0)
    g.salu('s_mov_b32', S(67), 0)
    s_tl = S(59)

    def issue_k():
        issue_lin(srdK, kv, sKoff, sKlds)
        if 'l2res' not in EXP:
            g.salu('s_add_u32', sKoff, sKoff, TILE)
        g.salu('s_and_b32', sKoff, sKoff, 0x7FFFF)
        g.salu('s_add_u32', sKlds, sKlds, TILE)
        g.scmp('s_cmp_eq_u32', sKlds, NKS * TILE)
        g.ins(f"s_cselect_b32 {sKlds}, 0, {sKlds}", 'salu', reads=[sKlds], writes=[sKlds])

    def issue_v():
        g.salu('s_add_u32', s_tl, sVlds, VRING)
        issue_lin(srdV, vv, sVoff, s_tl)
        if 'l2res' not in EXP:
            g.salu('s_add_u32', sVoff, sVoff, TILE)
        g.salu('s_and_b32', sVoff, sVoff, 0x7FFFF)
        g.salu('s_add_u32', sVlds, sVlds, TILE)
        g.salu('s_and_b32', sVlds, sVlds, 0xFFFF)

    def issue_w(idx):
        g.salu('s_add_u32', s_tl, sVlds, VRING)
        wtile_idx(sWoff, S(67))
        g.salu('s_add_u32', S(67), S(67), 1)
        g.salu('s_lshl_b32', sWoff, sWoff, 18)
        g.salu('s_lshl_b32', S(66), s_h, 9)
        g.salu('s_add_u32', sWoff, sWoff, S(66))
        issue_wtile(sWoff, s_tl)
        g.salu('s_add_u32', sVlds, sVlds, TILE)
        g.salu('s_and_b32', sVlds, sVlds, 0xFFFF)

    def need(x):
        k, i = x
        if k == 'W': return max(i - 1, 0)
        if k == 'V': return 14 + i
        if k == 'O': return 47 + i
        return 14 if i < 2 else 13 + i
    def consumed(x):
        return need(x) + 1 if x[0] == 'V' else need(x)
    def size(x): return 28 if x[0] == 'O' else 16
    items = [('W', j) for j in range(NW)] + [('V', t) for t in range(NT)] + [('K', k) for k in range(NT)] + [('O', u) for u in range(8)]
    seq = sorted(items, key=lambda x: (need(x), {'W': 0, 'V': 1, 'K': 2, 'O': 3}[x[0]], x[1]))
    def slot_prev(x):
        k, i = x
        if k == 'O':
            if i >= 5: return [('O', i - 5)]
            return {0: [('K', 27), ('K', 28), ('K', 29)], 1: [('K', 30), ('K', 31)], 2: [('K', 31), ('K', 26), ('K', 27)],
                    3: [('V', 30), ('V', 31)], 4: [('V', 31), ('V', 28), ('V', 29)]}[i]
        if k == 'K':
            return [('K', i - NKS)] if i >= NKS else []
        u = i if k == 'W' else 14 + i
        u -= 4
        if u < 0: return []
        return [('W', u) if u < 14 else ('V', u - 14)]
    NEV = 15 + NT + 8
    def qidx(j):
        return max(i for i, x in enumerate(seq) if need(x) <= j)
    def span(lo, hi):
        return sum(size(x) for x in seq[lo:hi])
    sched = []
    ip = 0
    pre = []
    def can_issue(ipx, after_ev):
        x = seq[ipx]
        for sp in slot_prev(x):
            if consumed(sp) + 1 > after_ev:
                return False
        nxt_ev = after_ev + 1
        if nxt_ev < NEV and span(qidx(nxt_ev) + 1, ipx + 1) > 60:
            return False
        return True
    while ip < len(seq) and can_issue(ip, -1):
        pre.append(seq[ip]); ip += 1
    for j in range(NEV):
        n = span(qidx(j) + 1, ip)
        assert 0 <= n <= 63
        lst = []
        while ip < len(seq) and can_issue(ip, j):
            lst.append(seq[ip]); ip += 1
        sched.append((n, lst))
    assert ip == len(seq)
    if os.environ.get('SHOWSCHED'):
        print(pre); [print(j, x) for j, x in enumerate(sched)]
    def do_issue(x):
        if 'nodma' in EXP: return
        if x[0] == 'W': issue_w(x[1])
        elif x[0] == 'K': issue_k()
        elif x[0] == 'O': issue_wo(x[1])
        else: issue_v()
    stamp(1)
    for i_, x in enumerate(pre):
        do_issue(x)
        stamp(4 + i_)
    stamp(2)
    if DIAG:
        g.wait(vm=32)
        stamp(3)
    j = 0
    s_lc = S(57)
    while j < NEV:
        n, lst = sched[j]
        kinds = [x[0] for x in lst]
        run = 1
        while j + run < NEV and sched[j + run][0] == n and [x[0] for x in sched[j + run][1]] == kinds and 'O' not in kinds:
            run += 1
        if run >= 4:
            lab = g.newlabel('attn_ldloop')
            g.salu('s_mov_b32', s_lc, 0)
            g.label(lab)
            g.wait(vm=n)
            if not ('nobar' in EXP and 15 <= j <= 46): g.barrier()
            for x in lst: do_issue(x)
            g.salu('s_add_u32', s_lc, s_lc, 1)
            g.scmp('s_cmp_lt_u32', s_lc, run)
            g.branch('s_cbranch_scc1', lab)
            g.fence()
            j += run
        else:
            g.wait(vm=n)
            if not ('nobar' in EXP and 15 <= j <= 46): g.barrier()
            for x in lst: do_issue(x)
            j += 1
    g.label(Lend)
    g.raw('s_endpgm')
    return kd(name, 512, 256)


def gen_reduce(g):
    name = 'reduce_kernel'
    kernel_head(g, name)
    P = lambda i: S(4 + 2 * i, 2)
    srdP, srdOut = S(20, 4), S(24, 4)
    g.scmp('s_cmp_ge_u32', S(2), 336)
    g.branch('s_cbranch_scc1', 'reduce_end')
    g.raw("s_load_dwordx16 s[4:19], s[0:1], 0")
    g.salu('s_lshl_b32', S(40), S(2), 8)
    g.valu('v_add_u32', V(1), S(40), V(0))
    g.valu('v_lshlrev_b32', V(2), 4, V(1))
    g.valu('v_lshrrev_b32', V(4), 6, V(1))
    g.salu('s_mov_b32', S(41), hex((2**32 + 27) // 28))
    g.valu('v_mul_hi_u32', V(5), V(4), S(41))
    g.valu('v_mul_u32_u24', V(6), 28, V(5))
    g.valu('v_sub_u32', V(4), V(4), V(6))
    g.valu('v_and_b32', V(6), 31, V(1))
    g.valu('v_lshl_add_u32', V(5), V(5), 5, V(6))
    g.valu('v_mul_u32_u24', V(3), 896, V(5))
    g.valu('v_lshl_add_u32', V(3), V(4), 5, V(3))
    g.valu('v_bfe_u32', V(5), V(1), 5, 1)
    g.valu('v_lshl_add_u32', V(3), V(5), 4, V(3))
    g.wait(lgkm=0)
    make_srd(g, srdP, P(7), 16 * 1536 * 448 * 2)
    make_srd(g, srdOut, P(5), 1536 * 448 * 2)
    for h in range(16):
        g.salu('s_mov_b32', S(44 + h), h * 1536 * 448 * 2)
    for h in range(16):
        g.buf_load('buffer_load_dwordx4', V(16 + 4 * h, 4), V(2), srdP, S(44 + h))
    acc = V(8, 8)
    for h in range(16):
        for i in range(4):
            src = V(16 + 4 * h + i)
            if h == 0:
                g.valu('v_lshlrev_b32', acc[2 * i], 16, src)
                g.valu('v_and_b32', acc[2 * i + 1], '0xffff0000', src)
            else:
                g.valu('v_lshlrev_b32', V(80), 16, src)
                g.valu('v_and_b32', V(81), '0xffff0000', src)
                g.valu('v_add_f32', acc[2 * i], acc[2 * i], V(80))
                g.valu('v_add_f32', acc[2 * i + 1], acc[2 * i + 1], V(81))
    for i in range(4):
        g.valu('v_cvt_pk_bf16_f32', V(84 + i), acc[2 * i], acc[2 * i + 1])
    g.buf_store('buffer_store_dwordx4', V(84, 4), V(3), srdOut, 0)
    g.label('reduce_end')
    g.raw('s_endpgm')
    return kd(name, 88, 88)


def main():
    out = HEADER
    out += "; @launch kernel=attn_kernel grid=(256,1,1) block=(256,1,1) lds=163840\n"
    out += "; @launch kernel=reduce_kernel grid=(336,1,1) block=(256,1,1) lds=0\n"
    out += '.amdgcn_target "amdgcn-amd-amdhsa--gfx950"\n.text\n'
    g = Gen(); k1 = gen_attn(g); out += g.text() + k1
    g = Gen(); g.nlabel = 1000; k2 = gen_reduce(g); out += g.text() + k2
    open(os.environ.get('OUT', 'standalone__mha_block_cached__near_ridge.s'), 'w').write(out)

if __name__ == "__main__":
    main()
```

```python
import sys, math
sys.path.insert(0, 'gen')
from asmgen import *

HEADER = """; Kernarg layout for this problem (64 bytes, ptrs only, base s[0:1]):
"""

def kd(name, vgpr, acc_off, sgpr=102):
    return f""".section .rodata,"a"
.p2align 6
.amdhsa_kernel {name}
  .amdhsa_next_free_vgpr {vgpr}
  .amdhsa_next_free_sgpr {sgpr}
  .amdhsa_accum_offset {acc_off}
  .amdhsa_group_segment_fixed_size 0
  .amdhsa_kernarg_size 64
  .amdhsa_user_sgpr_count 2
  .amdhsa_user_sgpr_kernarg_segment_ptr 1
  .amdhsa_system_sgpr_workgroup_id_x 1
.end_amdhsa_kernel
.text
"""

def kernel_head(g, name):
    g.lines.append(f".globl {name}")
    g.lines.append(".p2align 8")
    g.lines.append(f".type {name},@function")
    g.lines.append(f"{name}:")
    g.fence()

def make_srd(g, srd, ptr, nbytes, add_lo=None):
    if add_lo is None:
        g.salu('s_mov_b32', srd[0], ptr[0])
        g.salu('s_mov_b32', srd[1], ptr[1])
    else:
        g.salu('s_add_u32', srd[0], ptr[0], add_lo)
        g.salu('s_addc_u32', srd[1], ptr[1], 0)
    g.salu('s_mov_b32', srd[2], hex(nbytes))
    g.salu('s_mov_b32', srd[3], '0x00020000')

def perm_chunk_valu(g, dst, cm, tmp):
    g.valu('v_and_b32', dst, 4, cm)
    g.valu('v_and_b32', tmp, 1, cm)
    g.valu('v_lshlrev_b32', tmp, 1, tmp)
    g.valu('v_or_b32', dst, dst, tmp)
    g.valu('v_lshrrev_b32', tmp, 1, cm)
    g.valu('v_and_b32', tmp, 1, tmp)
    g.valu('v_or_b32', dst, dst, tmp)

import os
EXP = os.environ.get('EXP', '')
WFLAGS = os.environ.get('WFLAGS', '')
XFLAGS = os.environ.get('XFLAGS', '')
NT = 32
NW = 14
KRING = 0
NKS = 6
VRING = 98304
TILE = 16384
WOT = 28672
WO_SLOT = [2 * WOT, 0, WOT, VRING, VRING + WOT, 2 * WOT, 0, WOT]

def interleave(g, mf, fill):
    n = len(mf)
    k = 0
    for i, m in enumerate(mf):
        m()
        upto = (len(fill) * (i + 1)) // n
        while k < upto:
            fill[k]()
            k += 1

def gen_attn(g):
    import struct
    name = 'attn_kernel'
    kernel_head(g, name)
    P = lambda i: S(4 + 2 * i, 2)
    srdK, srdV, srdW, srdX, srdO = S(20, 4), S(24, 4), S(28, 4), S(32, 4), S(36, 4)
    s_bh, s_half, s_b, s_h, s_wave = S(40), S(41), S(42), S(43), S(44)
    st0, st1 = S(45), S(46)
    s_c = S(50)
    s_rot = S(58)
    Lend = 'attn_end'
    g.scmp('s_cmp_ge_u32', S(2), 256)
    g.branch('s_cbranch_scc1', Lend)
    g.raw("s_load_dwordx16 s[4:19], s[0:1], 0")
    g.salu('s_lshr_b32', st0, S(2), 4)
    g.salu('s_lshl_b32', st0, st0, 3)
    g.salu('s_and_b32', st1, S(2), 7)
    g.salu('s_add_u32', s_bh, st0, st1)
    g.salu('s_lshr_b32', st0, S(2), 3)
    g.salu('s_and_b32', s_half, st0, 1)
    g.salu('s_lshr_b32', s_b, s_bh, 4)
    g.salu('s_and_b32', s_h, s_bh, 15)
    g.valu('v_lshrrev_b32', V(1), 6, V(0))
    g.readfirstlane(s_wave, V(1))
    cval = struct.unpack('<I', struct.pack('<f', math.log2(math.e) / 16.0))[0]
    g.salu('s_mov_b32', s_c, hex(cval))
    g.salu('s_mul_i32', s_rot, s_bh, 11)
    g.salu('s_and_b32', s_rot, s_rot, 31)
    g.salu('s_lshl_b32', s_rot, s_rot, 14)
    s_wrot = S(65)
    g.salu('s_lshl_b32', s_wrot, s_b, 1)
    g.salu('s_add_u32', s_wrot, s_wrot, s_half)
    g.scmp('s_cmp_ge_u32', s_wrot, 14)
    g.ins(f"s_cselect_b32 {st0}, 14, 0", 'salu', writes=[st0])
    g.salu('s_sub_u32', s_wrot, s_wrot, st0)
    def wtile_idx(dst, pos):
        g.salu('s_add_u32', dst, s_wrot, pos)
        g.scmp('s_cmp_ge_u32', dst, 14)
        g.ins(f"s_cselect_b32 {st1}, 14, 0", 'salu', writes=[st1])
        g.salu('s_sub_u32', dst, dst, st1)
    g.wait(lgkm=0)
    g.salu('s_lshl_b32', st0, s_bh, 19)
    make_srd(g, srdK, P(1), 524288, st0)
    make_srd(g, srdV, P(2), 524288, st0)
    make_srd(g, srdW, P(3), 448 * 4096 * 2)
    make_srd(g, srdX, P(0), 8 * 192 * 448 * 2)
    make_srd(g, srdO, P(7), 16 * 1536 * 448 * 2)
    srdWo = S(76, 4)
    g.salu('s_mul_i32', st0, s_h, 256 * 896)
    make_srd(g, srdWo, P(4), 256 * 896, st0)
    DIAG = os.environ.get('DIAG')
    srdD = S(68, 4)
    if DIAG:
        make_srd(g, srdD, P(6), 256)
    def stamp(idx):
        if not DIAG: return
        lab = g.newlabel('st')
        g.scmp('s_cmp_lg_u32', S(2), int(DIAG))
        g.branch('s_cbranch_scc1', lab)
        g.raw("s_memrealtime s[72:73]" if idx >= 10 else "s_memtime s[72:73]")
        g.raw("s_waitcnt lgkmcnt(0)")
        g.raw("v_mov_b32 v126, s72")
        g.raw(f"s_lshl_b32 s74, s44, 6")
        g.raw(f"s_add_u32 s74, s74, {idx*4}")
        g.raw("v_mov_b32 v127, s74")
        g.raw("buffer_store_dword v126, v127, s[68:71], 0 offen")
        g.raw("s_waitcnt vmcnt(0)") if False else None
        g.lines.append(f"{lab}:")
    vl = V(1)
    g.valu('v_and_b32', vl, 63, V(0))
    vhi, vlo31 = V(2), V(3)
    stamp(0)
    stamp(10)
    g.valu('v_lshrrev_b32', vhi, 5, vl)
    g.valu('v_and_b32', vlo31, 31, vl)
    kv = [V(32 + i) for i in range(8)]
    t0, t1, t2 = V(24), V(25), V(26)
    for i in range(8):
        g.valu('v_add_u32', t0, 2 * i, vhi)
        g.valu('v_xor_b32', t0, t0, vlo31)
        g.valu('v_lshlrev_b32', t0, 4, t0)
        g.valu('v_lshl_add_u32', kv[i], vhi, 9, t0)

    vv = [V(40 + i) for i in range(2)]
    wv = [V(42 + i) for i in range(2)]
    for i in range(2):
        g.valu('v_add_u32', t0, 2 * i, vhi)
        g.valu('v_lshlrev_b32', t0, 2, t0)
        g.valu('v_xor_b32', t0, t0, vlo31)
        g.valu('v_lshlrev_b32', t0, 4, t0)
        g.valu('v_lshl_add_u32', vv[i], vhi, 9, t0)
        g.valu('v_lshl_add_u32', wv[i], vhi, 13, t0)

    g.salu('s_mov_b32', S(67), 0)
    g.salu('s_mov_b32', S(83), 0)
    g.salu('s_mov_b32', S(84), VRING)
    g.salu('s_lshl_b32', S(85), s_h, 9)
    def issue_wq(tag=None):
        wtile_idx(S(86), S(67))
        g.salu('s_add_u32', S(67), S(67), 1)
        g.salu('s_lshl_b32', S(86), S(86), 18)
        g.salu('s_add_u32', S(86), S(86), S(85))
        g.salu('s_add_u32', S(87), S(83), S(84))
        for i in range(16):
            g.salu('s_add_u32', 'm0', S(87), i * 1024)
            g.buf_dma(wv[i & 1], srdW, S(86), offset=0, flags=WFLAGS, tag=tag)
            if i < 15:
                g.salu('s_add_u32', S(86), S(86), 16384)
        g.salu('s_add_u32', S(83), S(83), TILE)
        g.salu('s_and_b32', S(83), S(83), 0xFFFF)

    def issue_lin(srd, voffs, soff, slds):
        for q in range(4):
            g.salu('s_add_u32', 'm0', slds, q * 4096)
            g.salu('s_add_u32', st0, soff, q * 4096)
            for i4 in range(4):
                i = q * 4 + i4
                g.buf_dma(voffs[i % len(voffs)], srd, st0, offset=i4 * 1024, flags=' nt')

    g.scmp('s_cmp_eq_u32', s_wave, 3)
    g.branch('s_cbranch_scc1', 'attn_loader')

    g.salu('s_mul_i32', st0, s_half, 96)
    g.salu('s_lshl_b32', st1, s_wave, 5)
    g.salu('s_add_u32', st0, st0, st1)
    g.salu('s_mul_i32', st1, s_b, 192)
    g.salu('s_add_u32', st0, st0, st1)
    vrow = V(4)
    g.valu('v_add_u32', vrow, st0, vlo31)
    vx = V(5)
    g.salu('s_mov_b32', st1, 896)
    g.valu('v_mul_lo_u32', vx, vrow, st1)
    g.valu('v_lshl_add_u32', vx, vhi, 4, vx)
    xf = [A(128 + 4 * i, 4) for i in range(28)]
    def xloads(lo, hi):
        for t in range(lo, hi):
            wtile_idx(S(66), t)
            g.salu('s_lshl_b32', S(66), S(66), 6)
            for s_ in range(2):
                g.buf_load('buffer_load_dwordx4', xf[2 * t + s_], vx, srdX, S(66), offset=32 * s_, flags=XFLAGS)
    xloads(0, 3)
    vo = V(6)
    g.salu('s_lshl_b32', st1, s_h, 9)
    g.valu('v_lshlrev_b32', vo, 13, vrow)
    g.valu('v_add_u32', vo, st1, vo)
    g.valu('v_lshl_add_u32', vo, vhi, 4, vo)
    kaddr = [V(8 + i) for i in range(8)]
    g.valu('v_and_b32', t1, 15, vlo31)
    for jj in range(8):
        g.valu('v_add_u32', t0, 2 * jj, vhi)
        g.valu('v_xor_b32', t0, t0, t1)
        g.valu('v_lshlrev_b32', t0, 4, t0)
        g.valu('v_lshl_add_u32', kaddr[jj], vlo31, 9, t0)
    vaddr = [V(16 + i) for i in range(4)]
    waddr = [V(20 + i) for i in range(4)]
    waddr2 = [V(44 + i) for i in range(4)]
    waddr3 = [V(48 + i) for i in range(4)]
    vrr, vcm, vdch = V(27), V(28), V(29)
    g.valu('v_lshrrev_b32', vrr, 2, vl)
    g.valu('v_and_b32', vrr, 3, vrr)
    g.valu('v_lshrrev_b32', t0, 4, vl)
    g.valu('v_and_b32', t0, 1, t0)
    g.valu('v_and_b32', vcm, 3, vl)
    g.valu('v_lshl_add_u32', vcm, t0, 2, vcm)
    perm_chunk_valu(g, vdch, vcm, t0)
    for tt in range(4):
        g.valu('v_xor_b32', t0, tt, vrr)
        g.valu('v_lshlrev_b32', t0, 6, t0)
        g.valu('v_lshl_add_u32', t0, vdch, 3, t0)
        g.valu('v_add_u32', t0, VRING, t0)
        g.valu('v_lshl_add_u32', t1, vhi, 2, vrr)
        g.valu('v_lshl_add_u32', vaddr[tt], t1, 9, t0)
        g.valu('v_lshl_add_u32', t1, vhi, 3, vrr)
        g.valu('v_lshl_add_u32', waddr[tt], t1, 9, t0)
        g.valu('v_subrev_u32', waddr[tt], VRING, waddr[tt])
        g.valu('v_add_u32', waddr2[tt], 65536, waddr[tt])
        g.valu('v_add_u32', waddr3[tt], 131072, waddr[tt])

    O = [V(128 + 16 * T, 16) for T in range(8)]
    KF = [A(4 * j, 4) for j in range(16)]
    def VFb(b):
        return [[A(64 * b + 8 * T + 4 * s, 4) for s in range(2)] for T in range(8)]
    VF = VFb(1)
    QF = [A(128 + 4 * j, 4) for j in range(16)]
    Sb = [V(32, 16), V(48, 16)]
    Pf = [V(64, 4), V(68, 4)]
    vm, vlsum, vtmax, vtm2 = V(72), V(73), V(74), V(75)

    def v_reads(addrs, slot, rowstep, VFx):
        out = []
        for T in range(8):
            for s in range(2):
                for r in range(2):
                    off = slot * TILE + (16 * s + rowstep * r) * 512 + (T >> 2) * 256
                    out.append(lambda T=T, s=s, r=r, off=off: g.ds_read(
                        'ds_read_b64_tr_b16', VFx[T][s].sub(2 * r, 2), addrs[T & 3], off))
        return out

    def k_reads(extra=0):
        return [lambda j=j: g.ds_read('ds_read_b128', KF[j], kaddr[j & 7], extra + (j >> 3) * 256)
                for j in range(16)]
    s_kslot, s_kd = S(62), S(63)
    def k_advance():
        ops = []
        ops.append(lambda: g.salu('s_add_u32', s_kslot, s_kslot, 1))
        ops.append(lambda: g.scmp('s_cmp_eq_u32', s_kslot, NKS))
        ops.append(lambda: g.ins(f"s_cselect_b32 {s_kd}, s64, {TILE}", 'salu', writes=[s_kd]))
        ops.append(lambda: g.ins(f"s_cselect_b32 {s_kslot}, 0, {s_kslot}", 'salu', reads=[s_kslot], writes=[s_kslot]))
        for jj in range(8):
            ops.append(lambda jj=jj: g.valu('v_add_u32', kaddr[jj], s_kd, kaddr[jj]))
        return ops
    g.salu('s_mov_b32', s_kslot, 0)
    g.salu('s_mov_b32', S(64), hex((-(NKS-1)*TILE) & 0xffffffff))

    def wslot(i):
        return 6 + (i & 3)
    def w_reads(i):
        sl = wslot(i)
        return v_reads([waddr, waddr2, waddr3][sl >> 2], sl & 3, 4, VFb(i & 1))
    g.barrier()
    for f in w_reads(0): f()
    for t in range(NW):
        if t > 0:
            g.barrier()
        if t + 3 < NW:
            xloads(t + 3, t + 4)
        mf = []
        for T in range(8):
            for s in range(2):
                first = (t == 0 and s == 0)
                mf.append(lambda T=T, s=s, first=first, t=t: g.mfma32(O[T], VFb(t & 1)[T][s], xf[2 * t + s], 0 if first else O[T]))
        fill = w_reads(t + 1) if t + 1 < NW else []
        interleave(g, mf, fill)
        g.wait(lgkm=0)
    for T in range(8):
        for s in range(2):
            for i in range(4):
                g.valu('v_cvt_pk_bf16_f32', V(76 + i), O[T][8 * s + 2 * i], O[T][8 * s + 2 * i + 1])
            for i in range(4):
                g.accw(QF[2 * T + s][i], V(76 + i))
    for T in range(8):
        for i in range(16):
            g.valu('v_mov_b32', O[T][i], 0)
    g.valu('v_mov_b32', vm, '0xf149f2ca')
    g.valu('v_mov_b32', vlsum, 0)

    def qk_mfmas(Sd):
        return [lambda j=j: g.mfma32(Sd, KF[j], QF[j], 0 if j == 0 else Sd) for j in range(16)]

    def max_ops(Sd):
        ops = []
        ops.append(lambda: g.valu('v_max3_f32', vtmax, Sd[0], Sd[1], Sd[2]))
        for i in range(3, 15, 2):
            ops.append(lambda i=i: g.valu('v_max3_f32', vtmax, vtmax, Sd[i], Sd[i + 1]))
        ops.append(lambda: g.valu('v_max_f32', vtmax, vtmax, Sd[15]))
        ops.append(lambda: g.valu('v_mov_b32', vtm2, vtmax))
        ops.append(lambda: g.perm32swap(vtmax, vtm2))
        ops.append(lambda: g.valu('v_max_f32', vtmax, vtmax, vtm2))
        ops.append(lambda: g.valu('v_mul_f32', vtmax, s_c, vtmax))
        ops.append(lambda: g.valu('v_sub_f32', vtm2, vtmax, vm))
        ops.append(lambda: g.vcmp('v_cmp_lt_f32', 'vcc', '0x41000000', vtm2))
        return ops

    stamp(1)
    g.barrier()
    for f in k_reads(): f()
    for f in qk_mfmas(Sb[0]): f()
    for f in k_reads(TILE): f()
    for f in k_advance(): f()
    for f in k_advance(): f()
    for f in max_ops(Sb[0]): f()
    PRELOOP_HOOK = len(g.lines)

    def rescale_block():
        skip = g.newlabel('attn_nors')
        g.branch('s_cbranch_vccz', skip)
        g.nop(16)
        g.valu('v_max_f32', vtmax, vtmax, vm)
        g.valu('v_sub_f32', vtm2, vm, vtmax)
        g.valu('v_exp_f32', vtm2, vtm2)
        g.valu('v_mov_b32', vm, vtmax)
        g.valu('v_mul_f32', vlsum, vlsum, vtm2)
        for T in range(8):
            for i in range(16):
                g.valu('v_mul_f32', O[T][i], O[T][i], vtm2)
        g.nop(4)
        g.label(skip)

    def v_reads_s(slot, s_):
        out = []
        for T in range(8):
            for r in range(2):
                off = slot * TILE + (16 * s_ + 8 * r) * 512 + (T >> 2) * 256
                out.append(lambda T=T, r=r, off=off: g.ds_read(
                    'ds_read_b64_tr_b16', VF[T][s_].sub(2 * r, 2), vaddr[T & 3], off))
        return out

    def softmax_ops(cur, lo, hi):
        ops = []
        for i in range(lo, hi + 2):
            if i < hi:
                ops.append(lambda i=i: g.valu('v_fma_f32', cur[i], cur[i], s_c, f"-{vm}"))
            if lo <= i - 1 < hi:
                ops.append(lambda i=i: g.valu('v_exp_f32', cur[i - 1], cur[i - 1]))
            if lo <= i - 2 < hi:
                ops.append(lambda i=i: g.valu('v_add_f32', vlsum, vlsum, cur[i - 2]))
                if (i - 2) & 1:
                    j = (i - 2) >> 1
                    ops.append(lambda j=j: g.valu('v_cvt_pk_bf16_f32', Pf[j >> 2][j & 3], cur[2 * j], cur[2 * j + 1]))
        return ops

    def mix(a_, b_):
        out = []
        na, nb = len(a_), len(b_)
        ia = ib = 0
        while ia < na or ib < nb:
            if ib >= nb or (ia < na and ia * nb <= ib * na):
                out.append(a_[ia]); ia += 1
            else:
                out.append(b_[ib]); ib += 1
        return out

    def iteration(t_mod4, do_qk=True, do_kread=True, do_vnext=True):
        cur, nxt = Sb[t_mod4 & 1], Sb[(t_mod4 + 1) & 1]
        g.wait(vm=0)
        if 'nobar' not in EXP: g.barrier()
        if 'nocomp' in EXP: return
        vs1 = v_reads_s((14 + t_mod4) % 4, 1)
        vn0 = v_reads_s((15 + t_mod4) % 4, 0) if do_vnext else []
        kr = k_reads() if do_kread else []
        qk = qk_mfmas(nxt) if do_qk else []
        pv = [[(lambda T=T, s_=s_: g.mfma32(O[T], VF[T][s_], Pf[s_], O[T])) for T in range(8)] for s_ in range(2)]
        if 'nolds' in EXP:
            vs1 = []; vn0 = []; kr = []
        if 'nosm' in EXP:
            softmax_ops_ = lambda *a: []
        else:
            softmax_ops_ = softmax_ops
        fa = mix(softmax_ops_(cur, 0, 8), vs1[:4])
        fb = mix(softmax_ops_(cur, 8, 12), vs1[4:] + kr[:6])
        fc = mix(softmax_ops_(cur, 12, 16), kr[6:8] + vn0)
        fd = kr[8:] + (k_advance() if do_kread else [])
        if do_qk:
            fd = fd[:4] + max_ops(nxt) + fd[4:]
        if do_qk:
            interleave(g, qk[:8], fa)
        else:
            for f in fa: f()
        interleave(g, pv[0], fb)
        if do_qk:
            interleave(g, qk[8:], fc)
        else:
            for f in fc: f()
        interleave(g, pv[1], fd)
        if do_qk:
            rescale_block()
        g.wait(lgkm=0)

    for f in v_reads_s(14 % 4, 0): f()
    rescale_block()
    g.wait(lgkm=0)
    s_cnt = S(51)
    g.salu('s_mov_b32', s_cnt, 0)
    g.label('attn_loop')
    for u in range(4):
        iteration(u)
    g.salu('s_add_u32', s_cnt, s_cnt, 1)
    g.scmp('s_cmp_lt_u32', s_cnt, 7)
    g.branch('s_cbranch_scc1', 'attn_loop')
    g.fence()
    iteration(0)
    iteration(1)
    iteration(2, do_kread=False)
    iteration(3, do_qk=False, do_kread=False, do_vnext=False)
    stamp(3)
    g.nop(16)
    g.valu('v_mov_b32', vtm2, vlsum)
    g.perm32swap(vlsum, vtm2)
    g.valu('v_add_f32', vlsum, vlsum, vtm2)
    g.valu('v_rcp_f32', vlsum, vlsum)
    OF = QF
    for T in range(8):
        for i in range(16):
            g.valu('v_mul_f32', O[T][i], O[T][i], vlsum)
        for s_ in range(2):
            for i in range(4):
                g.valu('v_cvt_pk_bf16_f32', V(76 + i), O[T][8 * s_ + 2 * i], O[T][8 * s_ + 2 * i + 1])
            for i in range(4):
                g.accw(OF[2 * T + s_][i], V(76 + i))
    wbe, wbo, wae, wao = V(8), V(9), V(10), V(11)
    g.valu('v_lshl_add_u32', t0, vhi, 3, vrr)
    g.salu('s_mov_b32', st1, 896)
    g.valu('v_mul_lo_u32', t0, t0, st1)
    g.valu('v_lshl_add_u32', t0, vdch, 3, t0)
    g.valu('v_lshrrev_b32', t1, 1, vrr)
    g.valu('v_lshlrev_b32', t1, 6, t1)
    g.valu('v_add_u32', wbe, t0, t1)
    g.valu('v_sub_u32', wbo, t0, t1)
    vpo = V(12)
    g.salu('s_mul_i32', st0, s_h, 48)
    g.salu('s_mul_i32', st1, s_b, 6)
    g.salu('s_add_u32', st0, st0, st1)
    g.salu('s_mul_i32', st1, s_half, 3)
    g.salu('s_add_u32', st0, st0, st1)
    g.salu('s_add_u32', st0, st0, s_wave)
    g.salu('s_mul_i32', st0, st0, 28672)
    g.valu('v_lshlrev_b32', vpo, 4, vl)
    g.valu('v_add_u32', vpo, st0, vpo)
    ACC = [V(32 + 16 * nt, 16) for nt in range(14)]
    def WFb(bf):
        return [[A(64 * bf + 8 * q + 4 * s_, 4) for s_ in range(2)] for q in range(7)]
    wadr = [(V(10), V(11)), (V(13), V(14))]
    def wo_reads(half, u):
        out = []
        we, wo_ = wadr[u & 1]
        for q in range(7):
            nt = 7 * half + q
            for s_ in range(2):
                for r in range(2):
                    out.append(lambda q=q, nt=nt, s_=s_, r=r: g.ds_read('ds_read_b64_tr_b16', WFb(half)[q][s_].sub(2 * r, 2),
                               wo_ if nt & 1 else we, (16 * s_ + 4 * r) * 896 + nt * 64))
        return out
    def wo_mfmas(half, u):
        out = []
        for s_ in range(2):
            for q in range(7):
                nt = 7 * half + q
                first = (u == 0 and s_ == 0)
                out.append(lambda q=q, nt=nt, s_=s_, first=first: g.mfma32(ACC[nt], WFb(half)[q][s_], OF[2 * u + s_], 0 if first else ACC[nt]))
        return out
    def wo_addr(u):
        g.valu('v_add_u32', wadr[u & 1][0], WO_SLOT[u], wbe)
        g.valu('v_add_u32', wadr[u & 1][1], WO_SLOT[u], wbo)
    wo_addr(0)
    for u in range(8):
        g.barrier()
        if u == 0:
            for f in wo_reads(0, 0): f()
        if u + 1 < 8:
            wo_addr(u + 1)
        interleave(g, wo_mfmas(0, u), wo_reads(1, u))
        interleave(g, wo_mfmas(1, u), wo_reads(0, u + 1) if u + 1 < 8 else [])
        g.wait(lgkm=0)
    stamp(2)
    g.nop(12)
    for nt in range(14):
        if nt % 2 == 0:
            g.salu('s_mov_b32', st0, (nt // 2) * 4096)
        for q in range(2):
            dst = V(16 + 4 * ((2 * nt + q) & 1), 4)
            for i in range(4):
                g.valu('v_cvt_pk_bf16_f32', dst[i], ACC[nt][8 * q + 2 * i], ACC[nt][8 * q + 2 * i + 1])
            g.buf_store('buffer_store_dwordx4', dst, vpo, srdO, st0, offset=((nt & 1) * 2 + q) * 1024, flags=os.environ.get('SFLAGS', ''))
    if DIAG:
        g.wait(vm=0)
    stamp(4)
    stamp(11)
    g.raw('s_endpgm')

    g.label('attn_loader')
    ov = [V(48 + i) for i in range(7)]
    g.salu('s_mov_b32', st0, hex((2**32 + 55) // 56))
    g.salu('s_mov_b32', st1, 56)
    for i in range(7):
        g.valu('v_add_u32', t0, 64 * i, vl)
        g.valu('v_mul_hi_u32', t1, t0, st0)
        g.valu('v_mul_lo_u32', t2, t1, st1)
        g.valu('v_sub_u32', t0, t0, t2)
        g.valu('v_lshrrev_b32', t2, 1, t1)
        g.valu('v_and_b32', t2, 1, t2)
        g.valu('v_lshlrev_b32', t2, 2, t2)
        g.valu('v_xor_b32', t0, t0, t2)
        g.valu('v_lshlrev_b32', t0, 4, t0)
        g.valu('v_mul_u32_u24', t1, 896, t1)
        g.valu('v_add_u32', ov[i], t0, t1)
    def issue_wo(u):
        for i in range(28):
            g.salu('s_mov_b32', 'm0', WO_SLOT[u] + i * 1024)
            g.salu('s_mov_b32', st0, u * WOT + (i // 7) * 7168)
            g.buf_dma(ov[i % 7], srdWo, st0, offset=0)
    sKoff, sKlds, sVoff, sVlds, sWoff = S(52), S(53), S(54), S(55), S(56)
    g.salu('s_mov_b32', sKoff, s_rot)
    g.salu('s_mov_b32', sKlds, KRING)
    g.salu('s_mov_b32', sVoff, s_rot)
    g.salu('s_mov_b32', sVlds, 0)
    s_tl = S(59)

    def issue_k():
        issue_lin(srdK, kv, sKoff, sKlds)
        if 'l2res' not in EXP:
            g.salu('s_add_u32', sKoff, sKoff, TILE)
        g.salu('s_and_b32', sKoff, sKoff, 0x7FFFF)
        g.salu('s_add_u32', sKlds, sKlds, TILE)
        g.scmp('s_cmp_eq_u32', sKlds, NKS * TILE)
        g.ins(f"s_cselect_b32 {sKlds}, 0, {sKlds}", 'salu', reads=[sKlds], writes=[sKlds])

    def issue_v():
        g.salu('s_add_u32', s_tl, sVlds, VRING)
        issue_lin(srdV, vv, sVoff, s_tl)
        if 'l2res' not in EXP:
            g.salu('s_add_u32', sVoff, sVoff, TILE)
        g.salu('s_and_b32', sVoff, sVoff, 0x7FFFF)
        g.salu('s_add_u32', sVlds, sVlds, TILE)
        g.salu('s_and_b32', sVlds, sVlds, 0xFFFF)

    def issue_w(idx):
        issue_wq()
        g.salu('s_add_u32', sVlds, sVlds, TILE)
        g.salu('s_and_b32', sVlds, sVlds, 0xFFFF)

    def need(x):
        k, i = x
        if k == 'W': return max(i - 1, 0)
        if k == 'V': return 14 + i
        if k == 'O': return 47 + max(i - 1, 0)
        return 14 if i < 2 else 13 + i
    def consumed(x):
        if x[0] == 'O': return 47 + x[1]
        return need(x) + 1 if x[0] == 'V' else need(x)
    def size(x): return 28 if x[0] == 'O' else 16
    items = [('W', j) for j in range(NW)] + [('V', t) for t in range(NT)] + [('K', k) for k in range(NT)] + [('O', u) for u in range(8)]
    seq = sorted(items, key=lambda x: (need(x), {'W': 0, 'K': 1, 'V': 2, 'O': 3}[x[0]], x[1]))
    def slot_prev(x):
        k, i = x
        if k == 'O':
            if i >= 5: return [('O', i - 5)]
            return {0: [('K', 27), ('K', 28), ('K', 29)], 1: [('K', 30), ('K', 31)], 2: [('K', 31), ('K', 26), ('K', 27)],
                    3: [('V', 30), ('V', 31)], 4: [('V', 31), ('V', 28), ('V', 29)]}[i]
        if k == 'K':
            return [('K', i - NKS)] if i >= NKS else []
        u = i if k == 'W' else 14 + i
        u -= 4
        if u < 0: return []
        return [('W', u) if u < 14 else ('V', u - 14)]
    NEV = 15 + NT + 8
    def qidx(j):
        return max(i for i, x in enumerate(seq) if need(x) <= j)
    def span(lo, hi):
        return sum(size(x) for x in seq[lo:hi])
    sched = []
    ip = 0
    pre = []
    def can_issue(ipx, after_ev):
        x = seq[ipx]
        if x[0] == 'W' and x[1] >= 4 and after_ev < max(x[1] - 4, 1):
            return False
        for sp in slot_prev(x):
            if consumed(sp) + 1 > after_ev:
                return False
        nxt_ev = after_ev + 1
        if nxt_ev < NEV and span(qidx(nxt_ev) + 1, ipx + 1) > 60:
            return False
        return True
    while ip < len(seq) and can_issue(ip, -1):
        pre.append(seq[ip]); ip += 1
    for j in range(NEV):
        n = span(qidx(j) + 1, ip)
        assert 0 <= n <= 63
        lst = []
        while ip < len(seq) and can_issue(ip, j):
            lst.append(seq[ip]); ip += 1
        sched.append((n, lst))
    assert ip == len(seq)
    if os.environ.get('SHOWSCHED'):
        print(pre); [print(j, x) for j, x in enumerate(sched)]
    def do_issue(x):
        if 'nodma' in EXP: return
        if x[0] == 'W': issue_w(x[1])
        elif x[0] == 'K': issue_k()
        elif x[0] == 'O': issue_wo(x[1])
        else: issue_v()
    stamp(1)
    for i_, x in enumerate(pre):
        do_issue(x)
        stamp(4 + i_)
    stamp(2)
    if DIAG:
        g.wait(vm=32)
        stamp(3)
    j = 0
    s_lc = S(57)
    while j < NEV:
        n, lst = sched[j]
        kinds = [x[0] for x in lst]
        run = 1
        while j + run < NEV and sched[j + run][0] == n and [x[0] for x in sched[j + run][1]] == kinds and 'O' not in kinds:
            run += 1
        if run >= 4:
            lab = g.newlabel('attn_ldloop')
            g.salu('s_mov_b32', s_lc, 0)
            g.label(lab)
            g.wait(vm=n)
            if not ('nobar' in EXP and 15 <= j <= 46): g.barrier()
            for x in lst: do_issue(x)
            g.salu('s_add_u32', s_lc, s_lc, 1)
            g.scmp('s_cmp_lt_u32', s_lc, run)
            g.branch('s_cbranch_scc1', lab)
            g.fence()
            j += run
        else:
            g.wait(vm=n)
            if not ('nobar' in EXP and 15 <= j <= 46): g.barrier()
            for x in lst: do_issue(x)
            j += 1
    g.label(Lend)
    g.raw('s_endpgm')
    return kd(name, 512, 256)


def gen_reduce(g):
    name = 'reduce_kernel'
    kernel_head(g, name)
    P = lambda i: S(4 + 2 * i, 2)
    srdP, srdOut = S(20, 4), S(24, 4)
    g.scmp('s_cmp_ge_u32', S(2), 336)
    g.branch('s_cbranch_scc1', 'reduce_end')
    g.raw("s_load_dwordx16 s[4:19], s[0:1], 0")
    g.salu('s_lshl_b32', S(40), S(2), 8)
    g.valu('v_add_u32', V(1), S(40), V(0))
    g.valu('v_lshlrev_b32', V(2), 4, V(1))
    g.valu('v_lshrrev_b32', V(4), 6, V(1))
    g.salu('s_mov_b32', S(41), hex((2**32 + 27) // 28))
    g.valu('v_mul_hi_u32', V(5), V(4), S(41))
    g.valu('v_mul_u32_u24', V(6), 28, V(5))
    g.valu('v_sub_u32', V(4), V(4), V(6))
    g.valu('v_and_b32', V(6), 31, V(1))
    g.valu('v_lshl_add_u32', V(5), V(5), 5, V(6))
    g.valu('v_mul_u32_u24', V(3), 896, V(5))
    g.valu('v_lshl_add_u32', V(3), V(4), 5, V(3))
    g.valu('v_bfe_u32', V(5), V(1), 5, 1)
    g.valu('v_lshl_add_u32', V(3), V(5), 4, V(3))
    g.wait(lgkm=0)
    make_srd(g, srdP, P(7), 16 * 1536 * 448 * 2)
    make_srd(g, srdOut, P(5), 1536 * 448 * 2)
    for h in range(16):
        g.salu('s_mov_b32', S(44 + h), h * 1536 * 448 * 2)
    for h in range(16):
        g.buf_load('buffer_load_dwordx4', V(16 + 4 * h, 4), V(2), srdP, S(44 + h), flags=os.environ.get('RFLAGS', ''))
    acc = V(8, 8)
    for h in range(16):
        for i in range(4):
            src = V(16 + 4 * h + i)
            if h == 0:
                g.valu('v_lshlrev_b32', acc[2 * i], 16, src)
                g.valu('v_and_b32', acc[2 * i + 1], '0xffff0000', src)
            else:
                g.valu('v_lshlrev_b32', V(80), 16, src)
                g.valu('v_and_b32', V(81), '0xffff0000', src)
                g.valu('v_add_f32', acc[2 * i], acc[2 * i], V(80))
                g.valu('v_add_f32', acc[2 * i + 1], acc[2 * i + 1], V(81))
    for i in range(4):
        g.valu('v_cvt_pk_bf16_f32', V(84 + i), acc[2 * i], acc[2 * i + 1])
    g.buf_store('buffer_store_dwordx4', V(84, 4), V(3), srdOut, 0)
    g.label('reduce_end')
    g.raw('s_endpgm')
    return kd(name, 88, 88)


def main():
    out = HEADER
    out += "; @launch kernel=attn_kernel grid=(256,1,1) block=(256,1,1) lds=163840\n"
    out += "; @launch kernel=reduce_kernel grid=(336,1,1) block=(256,1,1) lds=0\n"
    out += '.amdgcn_target "amdgcn-amd-amdhsa--gfx950"\n.text\n'
    g = Gen(); k1 = gen_attn(g); out += g.text() + k1
    g = Gen(); g.nlabel = 1000; k2 = gen_reduce(g); out += g.text() + k2
    open(os.environ.get('OUT', 'standalone__mha_block_cached__near_ridge.s'), 'w').write(out)

if __name__ == "__main__":
    main()
```

```python
import sys, math
sys.path.insert(0, 'gen')
from asmgen import *

HEADER = """; Kernarg layout for this problem (64 bytes, ptrs only, base s[0:1]):
"""

def kd(name, vgpr, acc_off, sgpr=102):
    return f""".section .rodata,"a"
.p2align 6
.amdhsa_kernel {name}
  .amdhsa_next_free_vgpr {vgpr}
  .amdhsa_next_free_sgpr {sgpr}
  .amdhsa_accum_offset {acc_off}
  .amdhsa_group_segment_fixed_size 0
  .amdhsa_kernarg_size 64
  .amdhsa_user_sgpr_count 2
  .amdhsa_user_sgpr_kernarg_segment_ptr 1
  .amdhsa_system_sgpr_workgroup_id_x 1
.end_amdhsa_kernel
.text
"""

def kernel_head(g, name):
    g.lines.append(f".globl {name}")
    g.lines.append(".p2align 8")
    g.lines.append(f".type {name},@function")
    g.lines.append(f"{name}:")
    g.fence()

def make_srd(g, srd, ptr, nbytes, add_lo=None):
    if add_lo is None:
        g.salu('s_mov_b32', srd[0], ptr[0])
        g.salu('s_mov_b32', srd[1], ptr[1])
    else:
        g.salu('s_add_u32', srd[0], ptr[0], add_lo)
        g.salu('s_addc_u32', srd[1], ptr[1], 0)
    g.salu('s_mov_b32', srd[2], hex(nbytes))
    g.salu('s_mov_b32', srd[3], '0x00020000')

def perm_chunk_valu(g, dst, cm, tmp):
    g.valu('v_and_b32', dst, 4, cm)
    g.valu('v_and_b32', tmp, 1, cm)
    g.valu('v_lshlrev_b32', tmp, 1, tmp)
    g.valu('v_or_b32', dst, dst, tmp)
    g.valu('v_lshrrev_b32', tmp, 1, cm)
    g.valu('v_and_b32', tmp, 1, tmp)
    g.valu('v_or_b32', dst, dst, tmp)

import os
EXP = os.environ.get('EXP', '')
WFLAGS = os.environ.get('WFLAGS', '')
XFLAGS = os.environ.get('XFLAGS', '')
NT = 32
NW = 14
KRING = 0
NKS = 6
VRING = 98304
TILE = 16384
WOT = 28672
WO_SLOT = [2 * WOT, 0, WOT, VRING, VRING + WOT, 2 * WOT, 0, WOT]

def interleave(g, mf, fill):
    n = len(mf)
    k = 0
    for i, m in enumerate(mf):
        m()
        upto = (len(fill) * (i + 1)) // n
        while k < upto:
            fill[k]()
            k += 1

def gen_attn(g):
    import struct
    name = 'attn_kernel'
    kernel_head(g, name)
    P = lambda i: S(4 + 2 * i, 2)
    srdK, srdV, srdW, srdX, srdO = S(20, 4), S(24, 4), S(28, 4), S(32, 4), S(36, 4)
    s_bh, s_half, s_b, s_h, s_wave = S(40), S(41), S(42), S(43), S(44)
    st0, st1 = S(45), S(46)
    s_c = S(50)
    s_rot = S(58)
    Lend = 'attn_end'
    g.scmp('s_cmp_ge_u32', S(2), 256)
    g.branch('s_cbranch_scc1', Lend)
    g.raw("s_load_dwordx16 s[4:19], s[0:1], 0")
    g.salu('s_lshr_b32', st0, S(2), 4)
    g.salu('s_lshl_b32', st0, st0, 3)
    g.salu('s_and_b32', st1, S(2), 7)
    g.salu('s_add_u32', s_bh, st0, st1)
    g.salu('s_lshr_b32', st0, S(2), 3)
    g.salu('s_and_b32', s_half, st0, 1)
    g.salu('s_lshr_b32', s_b, s_bh, 4)
    g.salu('s_and_b32', s_h, s_bh, 15)
    g.valu('v_lshrrev_b32', V(1), 6, V(0))
    g.readfirstlane(s_wave, V(1))
    cval = struct.unpack('<I', struct.pack('<f', math.log2(math.e) / 16.0))[0]
    g.salu('s_mov_b32', s_c, hex(cval))
    g.salu('s_mul_i32', s_rot, s_bh, 11)
    g.salu('s_and_b32', s_rot, s_rot, 31)
    g.salu('s_lshl_b32', s_rot, s_rot, 14)
    s_wrot = S(65)
    g.salu('s_lshl_b32', s_wrot, s_b, 1)
    g.salu('s_add_u32', s_wrot, s_wrot, s_half)
    g.scmp('s_cmp_ge_u32', s_wrot, 14)
    g.ins(f"s_cselect_b32 {st0}, 14, 0", 'salu', writes=[st0])
    g.salu('s_sub_u32', s_wrot, s_wrot, st0)
    def wtile_idx(dst, pos):
        g.salu('s_add_u32', dst, s_wrot, pos)
        g.scmp('s_cmp_ge_u32', dst, 14)
        g.ins(f"s_cselect_b32 {st1}, 14, 0", 'salu', writes=[st1])
        g.salu('s_sub_u32', dst, dst, st1)
    g.wait(lgkm=0)
    g.salu('s_lshl_b32', st0, s_bh, 19)
    make_srd(g, srdK, P(1), 524288, st0)
    make_srd(g, srdV, P(2), 524288, st0)
    make_srd(g, srdW, P(3), 448 * 4096 * 2)
    make_srd(g, srdX, P(0), 8 * 192 * 448 * 2)
    make_srd(g, srdO, P(7), 16 * 1536 * 448 * 2)
    srdWo = S(76, 4)
    g.salu('s_mul_i32', st0, s_h, 256 * 896)
    make_srd(g, srdWo, P(4), 256 * 896, st0)
    DIAG = os.environ.get('DIAG')
    srdD = S(68, 4)
    if DIAG:
        make_srd(g, srdD, P(6), 256)
    def stamp(idx):
        if not DIAG: return
        lab = g.newlabel('st')
        g.scmp('s_cmp_lg_u32', S(2), int(DIAG))
        g.branch('s_cbranch_scc1', lab)
        g.raw("s_memrealtime s[72:73]" if idx >= 10 else "s_memtime s[72:73]")
        g.raw("s_waitcnt lgkmcnt(0)")
        g.raw("v_mov_b32 v126, s72")
        g.raw(f"s_lshl_b32 s74, s44, 6")
        g.raw(f"s_add_u32 s74, s74, {idx*4}")
        g.raw("v_mov_b32 v127, s74")
        g.raw("buffer_store_dword v126, v127, s[68:71], 0 offen")
        g.raw("s_waitcnt vmcnt(0)") if False else None
        g.lines.append(f"{lab}:")
    vl = V(1)
    g.valu('v_and_b32', vl, 63, V(0))
    vhi, vlo31 = V(2), V(3)
    stamp(0)
    stamp(10)
    g.valu('v_lshrrev_b32', vhi, 5, vl)
    g.valu('v_and_b32', vlo31, 31, vl)
    kv = [V(32 + i) for i in range(8)]
    t0, t1, t2 = V(24), V(25), V(26)
    for i in range(8):
        g.valu('v_add_u32', t0, 2 * i, vhi)
        g.valu('v_xor_b32', t0, t0, vlo31)
        g.valu('v_lshlrev_b32', t0, 4, t0)
        g.valu('v_lshl_add_u32', kv[i], vhi, 9, t0)

    vv = [V(40 + i) for i in range(2)]
    wv = [V(42 + i) for i in range(2)]
    for i in range(2):
        g.valu('v_add_u32', t0, 2 * i, vhi)
        g.valu('v_lshlrev_b32', t0, 2, t0)
        g.valu('v_xor_b32', t0, t0, vlo31)
        g.valu('v_lshlrev_b32', t0, 4, t0)
        g.valu('v_lshl_add_u32', vv[i], vhi, 9, t0)
        g.valu('v_lshl_add_u32', wv[i], vhi, 13, t0)

    g.salu('s_mov_b32', S(67), 0)
    g.salu('s_mov_b32', S(83), 0)
    g.salu('s_mov_b32', S(84), VRING)
    g.salu('s_lshl_b32', S(85), s_h, 9)
    def issue_wq(tag=None):
        wtile_idx(S(86), S(67))
        g.salu('s_add_u32', S(67), S(67), 1)
        g.salu('s_lshl_b32', S(86), S(86), 18)
        g.salu('s_add_u32', S(86), S(86), S(85))
        g.salu('s_add_u32', S(87), S(83), S(84))
        for i in range(16):
            g.salu('s_add_u32', 'm0', S(87), i * 1024)
            g.buf_dma(wv[i & 1], srdW, S(86), offset=0, flags=WFLAGS, tag=tag)
            if i < 15:
                g.salu('s_add_u32', S(86), S(86), 16384)
        g.salu('s_add_u32', S(83), S(83), TILE)
        g.salu('s_and_b32', S(83), S(83), 0xFFFF)

    def issue_lin(srd, voffs, soff, slds):
        for q in range(4):
            g.salu('s_add_u32', 'm0', slds, q * 4096)
            g.salu('s_add_u32', st0, soff, q * 4096)
            for i4 in range(4):
                i = q * 4 + i4
                g.buf_dma(voffs[i % len(voffs)], srd, st0, offset=i4 * 1024, flags=os.environ.get('KVFLAGS', ' nt'))

    g.scmp('s_cmp_eq_u32', s_wave, 3)
    g.branch('s_cbranch_scc1', 'attn_loader')

    g.salu('s_mul_i32', st0, s_half, 96)
    g.salu('s_lshl_b32', st1, s_wave, 5)
    g.salu('s_add_u32', st0, st0, st1)
    g.salu('s_mul_i32', st1, s_b, 192)
    g.salu('s_add_u32', st0, st0, st1)
    vrow = V(4)
    g.valu('v_add_u32', vrow, st0, vlo31)
    vx = V(5)
    g.salu('s_mov_b32', st1, 896)
    g.valu('v_mul_lo_u32', vx, vrow, st1)
    g.valu('v_lshl_add_u32', vx, vhi, 4, vx)
    xf = [A(128 + 4 * i, 4) for i in range(28)]
    def xloads(lo, hi):
        for t in range(lo, hi):
            wtile_idx(S(66), t)
            g.salu('s_lshl_b32', S(66), S(66), 6)
            for s_ in range(2):
                g.buf_load('buffer_load_dwordx4', xf[2 * t + s_], vx, srdX, S(66), offset=32 * s_, flags=XFLAGS)
    xloads(0, 3)
    vo = V(6)
    g.salu('s_lshl_b32', st1, s_h, 9)
    g.valu('v_lshlrev_b32', vo, 13, vrow)
    g.valu('v_add_u32', vo, st1, vo)
    g.valu('v_lshl_add_u32', vo, vhi, 4, vo)
    kaddr = [V(8 + i) for i in range(8)]
    g.valu('v_and_b32', t1, 15, vlo31)
    for jj in range(8):
        g.valu('v_add_u32', t0, 2 * jj, vhi)
        g.valu('v_xor_b32', t0, t0, t1)
        g.valu('v_lshlrev_b32', t0, 4, t0)
        g.valu('v_lshl_add_u32', kaddr[jj], vlo31, 9, t0)
    vaddr = [V(16 + i) for i in range(4)]
    waddr = [V(20 + i) for i in range(4)]
    waddr2 = [V(44 + i) for i in range(4)]
    waddr3 = [V(48 + i) for i in range(4)]
    vrr, vcm, vdch = V(27), V(28), V(29)
    g.valu('v_lshrrev_b32', vrr, 2, vl)
    g.valu('v_and_b32', vrr, 3, vrr)
    g.valu('v_lshrrev_b32', t0, 4, vl)
    g.valu('v_and_b32', t0, 1, t0)
    g.valu('v_and_b32', vcm, 3, vl)
    g.valu('v_lshl_add_u32', vcm, t0, 2, vcm)
    perm_chunk_valu(g, vdch, vcm, t0)
    for tt in range(4):
        g.valu('v_xor_b32', t0, tt, vrr)
        g.valu('v_lshlrev_b32', t0, 6, t0)
        g.valu('v_lshl_add_u32', t0, vdch, 3, t0)
        g.valu('v_add_u32', t0, VRING, t0)
        g.valu('v_lshl_add_u32', t1, vhi, 2, vrr)
        g.valu('v_lshl_add_u32', vaddr[tt], t1, 9, t0)
        g.valu('v_lshl_add_u32', t1, vhi, 3, vrr)
        g.valu('v_lshl_add_u32', waddr[tt], t1, 9, t0)
        g.valu('v_subrev_u32', waddr[tt], VRING, waddr[tt])
        g.valu('v_add_u32', waddr2[tt], 65536, waddr[tt])
        g.valu('v_add_u32', waddr3[tt], 131072, waddr[tt])

    O = [V(128 + 16 * T, 16) for T in range(8)]
    KF = [A(4 * j, 4) for j in range(16)]
    def VFb(b):
        return [[A(64 * b + 8 * T + 4 * s, 4) for s in range(2)] for T in range(8)]
    VF = VFb(1)
    QF = [A(128 + 4 * j, 4) for j in range(16)]
    Sb = [V(32, 16), V(48, 16)]
    Pf = [V(64, 4), V(68, 4)]
    vm, vlsum, vtmax, vtm2 = V(72), V(73), V(74), V(75)

    def v_reads(addrs, slot, rowstep, VFx):
        out = []
        for T in range(8):
            for s in range(2):
                for r in range(2):
                    off = slot * TILE + (16 * s + rowstep * r) * 512 + (T >> 2) * 256
                    out.append(lambda T=T, s=s, r=r, off=off: g.ds_read(
                        'ds_read_b64_tr_b16', VFx[T][s].sub(2 * r, 2), addrs[T & 3], off))
        return out

    def k_reads(extra=0):
        return [lambda j=j: g.ds_read('ds_read_b128', KF[j], kaddr[j & 7], extra + (j >> 3) * 256)
                for j in range(16)]
    s_kslot, s_kd = S(62), S(63)
    def k_advance():
        ops = []
        ops.append(lambda: g.salu('s_add_u32', s_kslot, s_kslot, 1))
        ops.append(lambda: g.scmp('s_cmp_eq_u32', s_kslot, NKS))
        ops.append(lambda: g.ins(f"s_cselect_b32 {s_kd}, s64, {TILE}", 'salu', writes=[s_kd]))
        ops.append(lambda: g.ins(f"s_cselect_b32 {s_kslot}, 0, {s_kslot}", 'salu', reads=[s_kslot], writes=[s_kslot]))
        for jj in range(8):
            ops.append(lambda jj=jj: g.valu('v_add_u32', kaddr[jj], s_kd, kaddr[jj]))
        return ops
    g.salu('s_mov_b32', s_kslot, 0)
    g.salu('s_mov_b32', S(64), hex((-(NKS-1)*TILE) & 0xffffffff))

    def wslot(i):
        return 6 + (i & 3)
    def w_reads(i):
        sl = wslot(i)
        return v_reads([waddr, waddr2, waddr3][sl >> 2], sl & 3, 4, VFb(i & 1))
    g.barrier()
    for f in w_reads(0): f()
    for t in range(NW):
        if t > 0:
            g.barrier()
        if t + 3 < NW:
            xloads(t + 3, t + 4)
        mf = []
        for T in range(8):
            for s in range(2):
                first = (t == 0 and s == 0)
                mf.append(lambda T=T, s=s, first=first, t=t: g.mfma32(O[T], VFb(t & 1)[T][s], xf[2 * t + s], 0 if first else O[T]))
        fill = w_reads(t + 1) if t + 1 < NW else []
        interleave(g, mf, fill)
        g.wait(lgkm=0)
    for T in range(8):
        for s in range(2):
            for i in range(4):
                g.valu('v_cvt_pk_bf16_f32', V(76 + i), O[T][8 * s + 2 * i], O[T][8 * s + 2 * i + 1])
            for i in range(4):
                g.accw(QF[2 * T + s][i], V(76 + i))
    for T in range(8):
        for i in range(16):
            g.valu('v_mov_b32', O[T][i], 0)
    g.valu('v_mov_b32', vm, '0xf149f2ca')
    g.valu('v_mov_b32', vlsum, 0)

    def qk_mfmas(Sd):
        return [lambda j=j: g.mfma32(Sd, KF[j], QF[j], 0 if j == 0 else Sd) for j in range(16)]

    def max_ops(Sd):
        ops = []
        ops.append(lambda: g.valu('v_max3_f32', vtmax, Sd[0], Sd[1], Sd[2]))
        for i in range(3, 15, 2):
            ops.append(lambda i=i: g.valu('v_max3_f32', vtmax, vtmax, Sd[i], Sd[i + 1]))
        ops.append(lambda: g.valu('v_max_f32', vtmax, vtmax, Sd[15]))
        ops.append(lambda: g.valu('v_mov_b32', vtm2, vtmax))
        ops.append(lambda: g.perm32swap(vtmax, vtm2))
        ops.append(lambda: g.valu('v_max_f32', vtmax, vtmax, vtm2))
        ops.append(lambda: g.valu('v_mul_f32', vtmax, s_c, vtmax))
        ops.append(lambda: g.valu('v_sub_f32', vtm2, vtmax, vm))
        ops.append(lambda: g.vcmp('v_cmp_lt_f32', 'vcc', '0x41000000', vtm2))
        return ops

    stamp(1)
    g.barrier()
    for f in k_reads(): f()
    for f in qk_mfmas(Sb[0]): f()
    for f in k_reads(TILE): f()
    for f in k_advance(): f()
    for f in k_advance(): f()
    for f in max_ops(Sb[0]): f()
    PRELOOP_HOOK = len(g.lines)

    rare_blocks = []
    def rescale_block():
        rare = g.newlabel('attn_rs')
        back = g.newlabel('attn_rsb')
        g.branch('s_cbranch_vccnz', rare)
        g.label(back)
        rare_blocks.append((rare, back))

    def emit_rare_blocks():
        for rare, back in rare_blocks:
            g.label(rare)
            g.nop(16)
            g.valu('v_max_f32', vtmax, vtmax, vm)
            g.valu('v_sub_f32', vtm2, vm, vtmax)
            g.valu('v_exp_f32', vtm2, vtm2)
            g.valu('v_mov_b32', vm, vtmax)
            g.valu('v_mul_f32', vlsum, vlsum, vtm2)
            for T in range(8):
                for i in range(16):
                    g.valu('v_mul_f32', O[T][i], O[T][i], vtm2)
            g.nop(4)
            g.branch('s_branch', back)

    def v_reads_s(slot, s_):
        out = []
        for T in range(8):
            for r in range(2):
                off = slot * TILE + (16 * s_ + 8 * r) * 512 + (T >> 2) * 256
                out.append(lambda T=T, r=r, off=off: g.ds_read(
                    'ds_read_b64_tr_b16', VF[T][s_].sub(2 * r, 2), vaddr[T & 3], off))
        return out

    def softmax_ops(cur, lo, hi):
        ops = []
        for i in range(lo, hi + 2):
            if i < hi:
                ops.append(lambda i=i: g.valu('v_fma_f32', cur[i], cur[i], s_c, f"-{vm}"))
            if lo <= i - 1 < hi:
                ops.append(lambda i=i: g.valu('v_exp_f32', cur[i - 1], cur[i - 1]))
            if lo <= i - 2 < hi:
                ops.append(lambda i=i: g.valu('v_add_f32', vlsum, vlsum, cur[i - 2]))
                if (i - 2) & 1:
                    j = (i - 2) >> 1
                    ops.append(lambda j=j: g.valu('v_cvt_pk_bf16_f32', Pf[j >> 2][j & 3], cur[2 * j], cur[2 * j + 1]))
        return ops

    def mix(a_, b_):
        out = []
        na, nb = len(a_), len(b_)
        ia = ib = 0
        while ia < na or ib < nb:
            if ib >= nb or (ia < na and ia * nb <= ib * na):
                out.append(a_[ia]); ia += 1
            else:
                out.append(b_[ib]); ib += 1
        return out

    def iteration(t_mod4, do_qk=True, do_kread=True, do_vnext=True):
        cur, nxt = Sb[t_mod4 & 1], Sb[(t_mod4 + 1) & 1]
        g.wait(vm=0)
        if 'nobar' not in EXP: g.barrier()
        if 'nocomp' in EXP: return
        vs1 = v_reads_s((14 + t_mod4) % 4, 1)
        vn0 = v_reads_s((15 + t_mod4) % 4, 0) if do_vnext else []
        kr = k_reads() if do_kread else []
        qk = qk_mfmas(nxt) if do_qk else []
        pv = [[(lambda T=T, s_=s_: g.mfma32(O[T], VF[T][s_], Pf[s_], O[T])) for T in range(8)] for s_ in range(2)]
        if 'nolds' in EXP:
            vs1 = []; vn0 = []; kr = []
        if 'nosm' in EXP:
            softmax_ops_ = lambda *a: []
        else:
            softmax_ops_ = softmax_ops
        fa = mix(softmax_ops_(cur, 0, 8), vs1[:4])
        fb = mix(softmax_ops_(cur, 8, 12), vs1[4:] + kr[:6])
        fc = mix(softmax_ops_(cur, 12, 16), kr[6:8] + vn0)
        fd = kr[8:] + (k_advance() if do_kread else [])
        if do_qk:
            fd = fd[:4] + max_ops(nxt) + fd[4:]
        if do_qk:
            interleave(g, qk[:8], fa)
        else:
            for f in fa: f()
        interleave(g, pv[0], fb)
        if do_qk:
            interleave(g, qk[8:], fc)
        else:
            for f in fc: f()
        interleave(g, pv[1], fd)
        if do_qk:
            rescale_block()
        g.wait(lgkm=0)

    for f in v_reads_s(14 % 4, 0): f()
    rescale_block()
    g.wait(lgkm=0)
    s_cnt = S(51)
    g.salu('s_mov_b32', s_cnt, 0)
    g.label('attn_loop')
    for u in range(4):
        iteration(u)
    g.salu('s_add_u32', s_cnt, s_cnt, 1)
    g.scmp('s_cmp_lt_u32', s_cnt, 7)
    g.branch('s_cbranch_scc1', 'attn_loop')
    g.fence()
    iteration(0)
    iteration(1)
    iteration(2, do_kread=False)
    iteration(3, do_qk=False, do_kread=False, do_vnext=False)
    stamp(3)
    g.nop(16)
    g.valu('v_mov_b32', vtm2, vlsum)
    g.perm32swap(vlsum, vtm2)
    g.valu('v_add_f32', vlsum, vlsum, vtm2)
    g.valu('v_rcp_f32', vlsum, vlsum)
    OF = QF
    for T in range(8):
        for i in range(16):
            g.valu('v_mul_f32', O[T][i], O[T][i], vlsum)
        for s_ in range(2):
            for i in range(4):
                g.valu('v_cvt_pk_bf16_f32', V(76 + i), O[T][8 * s_ + 2 * i], O[T][8 * s_ + 2 * i + 1])
            for i in range(4):
                g.accw(OF[2 * T + s_][i], V(76 + i))
    wbe, wbo, wae, wao = V(8), V(9), V(10), V(11)
    g.valu('v_lshl_add_u32', t0, vhi, 3, vrr)
    g.salu('s_mov_b32', st1, 896)
    g.valu('v_mul_lo_u32', t0, t0, st1)
    g.valu('v_lshl_add_u32', t0, vdch, 3, t0)
    g.valu('v_lshrrev_b32', t1, 1, vrr)
    g.valu('v_lshlrev_b32', t1, 6, t1)
    g.valu('v_add_u32', wbe, t0, t1)
    g.valu('v_sub_u32', wbo, t0, t1)
    vpo = V(12)
    g.salu('s_mul_i32', st0, s_h, 48)
    g.salu('s_mul_i32', st1, s_b, 6)
    g.salu('s_add_u32', st0, st0, st1)
    g.salu('s_mul_i32', st1, s_half, 3)
    g.salu('s_add_u32', st0, st0, st1)
    g.salu('s_add_u32', st0, st0, s_wave)
    g.salu('s_mul_i32', st0, st0, 28672)
    g.valu('v_lshlrev_b32', vpo, 4, vl)
    g.valu('v_add_u32', vpo, st0, vpo)
    ACC = [V(32 + 16 * nt, 16) for nt in range(14)]
    def WFb(bf):
        return [[A(64 * bf + 8 * q + 4 * s_, 4) for s_ in range(2)] for q in range(7)]
    wadr = [(V(10), V(11)), (V(13), V(14))]
    def wo_reads(half, u):
        out = []
        we, wo_ = wadr[u & 1]
        for q in range(7):
            nt = 7 * half + q
            for s_ in range(2):
                for r in range(2):
                    out.append(lambda q=q, nt=nt, s_=s_, r=r: g.ds_read('ds_read_b64_tr_b16', WFb(half)[q][s_].sub(2 * r, 2),
                               wo_ if nt & 1 else we, (16 * s_ + 4 * r) * 896 + nt * 64))
        return out
    def wo_mfmas(half, u):
        out = []
        for s_ in range(2):
            for q in range(7):
                nt = 7 * half + q
                first = (u == 0 and s_ == 0)
                out.append(lambda q=q, nt=nt, s_=s_, first=first: g.mfma32(ACC[nt], WFb(half)[q][s_], OF[2 * u + s_], 0 if first else ACC[nt]))
        return out
    def wo_addr(u):
        g.valu('v_add_u32', wadr[u & 1][0], WO_SLOT[u], wbe)
        g.valu('v_add_u32', wadr[u & 1][1], WO_SLOT[u], wbo)
    wo_addr(0)
    for u in range(8):
        g.barrier()
        if u == 0:
            for f in wo_reads(0, 0): f()
        if u + 1 < 8:
            wo_addr(u + 1)
        interleave(g, wo_mfmas(0, u), wo_reads(1, u))
        interleave(g, wo_mfmas(1, u), wo_reads(0, u + 1) if u + 1 < 8 else [])
        g.wait(lgkm=0)
    stamp(2)
    g.nop(12)
    for nt in range(14):
        if nt % 2 == 0:
            g.salu('s_mov_b32', st0, (nt // 2) * 4096)
        for q in range(2):
            dst = V(16 + 4 * ((2 * nt + q) & 1), 4)
            for i in range(4):
                g.valu('v_cvt_pk_bf16_f32', dst[i], ACC[nt][8 * q + 2 * i], ACC[nt][8 * q + 2 * i + 1])
            g.buf_store('buffer_store_dwordx4', dst, vpo, srdO, st0, offset=((nt & 1) * 2 + q) * 1024, flags=os.environ.get('SFLAGS', ''))
    if DIAG:
        g.wait(vm=0)
    stamp(4)
    stamp(11)
    g.raw('s_endpgm')
    emit_rare_blocks()

    g.label('attn_loader')
    ov = [V(48 + i) for i in range(7)]
    g.salu('s_mov_b32', st0, hex((2**32 + 55) // 56))
    g.salu('s_mov_b32', st1, 56)
    for i in range(7):
        g.valu('v_add_u32', t0, 64 * i, vl)
        g.valu('v_mul_hi_u32', t1, t0, st0)
        g.valu('v_mul_lo_u32', t2, t1, st1)
        g.valu('v_sub_u32', t0, t0, t2)
        g.valu('v_lshrrev_b32', t2, 1, t1)
        g.valu('v_and_b32', t2, 1, t2)
        g.valu('v_lshlrev_b32', t2, 2, t2)
        g.valu('v_xor_b32', t0, t0, t2)
        g.valu('v_lshlrev_b32', t0, 4, t0)
        g.valu('v_mul_u32_u24', t1, 896, t1)
        g.valu('v_add_u32', ov[i], t0, t1)
    def issue_wo(u):
        for i in range(28):
            g.salu('s_mov_b32', 'm0', WO_SLOT[u] + i * 1024)
            g.salu('s_mov_b32', st0, u * WOT + (i // 7) * 7168)
            g.buf_dma(ov[i % 7], srdWo, st0, offset=0)
    sKoff, sKlds, sVoff, sVlds, sWoff = S(52), S(53), S(54), S(55), S(56)
    g.salu('s_mov_b32', sKoff, s_rot)
    g.salu('s_mov_b32', sKlds, KRING)
    g.salu('s_mov_b32', sVoff, s_rot)
    g.salu('s_mov_b32', sVlds, 0)
    s_tl = S(59)

    def issue_k():
        issue_lin(srdK, kv, sKoff, sKlds)
        if 'l2res' not in EXP:
            g.salu('s_add_u32', sKoff, sKoff, TILE)
        g.salu('s_and_b32', sKoff, sKoff, 0x7FFFF)
        g.salu('s_add_u32', sKlds, sKlds, TILE)
        g.scmp('s_cmp_eq_u32', sKlds, NKS * TILE)
        g.ins(f"s_cselect_b32 {sKlds}, 0, {sKlds}", 'salu', reads=[sKlds], writes=[sKlds])

    def issue_v():
        g.salu('s_add_u32', s_tl, sVlds, VRING)
        issue_lin(srdV, vv, sVoff, s_tl)
        if 'l2res' not in EXP:
            g.salu('s_add_u32', sVoff, sVoff, TILE)
        g.salu('s_and_b32', sVoff, sVoff, 0x7FFFF)
        g.salu('s_add_u32', sVlds, sVlds, TILE)
        g.salu('s_and_b32', sVlds, sVlds, 0xFFFF)

    def issue_w(idx):
        issue_wq()
        g.salu('s_add_u32', sVlds, sVlds, TILE)
        g.salu('s_and_b32', sVlds, sVlds, 0xFFFF)

    def need(x):
        k, i = x
        if k == 'W': return max(i - 1, 0)
        if k == 'V': return 14 + i
        if k == 'O': return 47 + max(i - 1, 0)
        return 14 if i < 2 else 13 + i
    def consumed(x):
        if x[0] == 'O': return 47 + x[1]
        return need(x) + 1 if x[0] == 'V' else need(x)
    def size(x): return 28 if x[0] == 'O' else 16
    items = [('W', j) for j in range(NW)] + [('V', t) for t in range(NT)] + [('K', k) for k in range(NT)] + [('O', u) for u in range(8)]
    seq = sorted(items, key=lambda x: (need(x), {'W': 0, 'K': 1, 'V': 2, 'O': 3}[x[0]], x[1]))
    def slot_prev(x):
        k, i = x
        if k == 'O':
            if i >= 5: return [('O', i - 5)]
            return {0: [('K', 27), ('K', 28), ('K', 29)], 1: [('K', 30), ('K', 31)], 2: [('K', 31), ('K', 26), ('K', 27)],
                    3: [('V', 30), ('V', 31)], 4: [('V', 31), ('V', 28), ('V', 29)]}[i]
        if k == 'K':
            return [('K', i - NKS)] if i >= NKS else []
        u = i if k == 'W' else 14 + i
        u -= 4
        if u < 0: return []
        return [('W', u) if u < 14 else ('V', u - 14)]
    NEV = 15 + NT + 8
    def qidx(j):
        return max(i for i, x in enumerate(seq) if need(x) <= j)
    def span(lo, hi):
        return sum(size(x) for x in seq[lo:hi])
    sched = []
    ip = 0
    pre = []
    def can_issue(ipx, after_ev):
        x = seq[ipx]
        if x[0] == 'W' and x[1] >= 4 and after_ev < max(x[1] - 4, 1):
            return False
        for sp in slot_prev(x):
            if consumed(sp) + 1 > after_ev:
                return False
        nxt_ev = after_ev + 1
        if nxt_ev < NEV and span(qidx(nxt_ev) + 1, ipx + 1) > 60:
            return False
        return True
    while ip < len(seq) and can_issue(ip, -1):
        pre.append(seq[ip]); ip += 1
    for j in range(NEV):
        n = span(qidx(j) + 1, ip)
        assert 0 <= n <= 63
        lst = []
        while ip < len(seq) and can_issue(ip, j):
            lst.append(seq[ip]); ip += 1
        sched.append((n, lst))
    assert ip == len(seq)
    if os.environ.get('SHOWSCHED'):
        print(pre); [print(j, x) for j, x in enumerate(sched)]
    def do_issue(x):
        if 'nodma' in EXP: return
        if x[0] == 'W': issue_w(x[1])
        elif x[0] == 'K': issue_k()
        elif x[0] == 'O': issue_wo(x[1])
        else: issue_v()
    stamp(1)
    for i_, x in enumerate(pre):
        do_issue(x)
        stamp(4 + i_)
    stamp(2)
    if DIAG:
        g.wait(vm=32)
        stamp(3)
    j = 0
    s_lc = S(57)
    while j < NEV:
        n, lst = sched[j]
        kinds = [x[0] for x in lst]
        run = 1
        while j + run < NEV and sched[j + run][0] == n and [x[0] for x in sched[j + run][1]] == kinds and 'O' not in kinds:
            run += 1
        if run >= 4:
            lab = g.newlabel('attn_ldloop')
            g.salu('s_mov_b32', s_lc, 0)
            g.label(lab)
            g.wait(vm=n)
            if not ('nobar' in EXP and 15 <= j <= 46): g.barrier()
            for x in lst: do_issue(x)
            g.salu('s_add_u32', s_lc, s_lc, 1)
            g.scmp('s_cmp_lt_u32', s_lc, run)
            g.branch('s_cbranch_scc1', lab)
            g.fence()
            j += run
        else:
            g.wait(vm=n)
            if not ('nobar' in EXP and 15 <= j <= 46): g.barrier()
            for x in lst: do_issue(x)
            j += 1
    g.label(Lend)
    g.raw('s_endpgm')
    return kd(name, 512, 256)


def gen_reduce(g):
    name = 'reduce_kernel'
    kernel_head(g, name)
    P = lambda i: S(4 + 2 * i, 2)
    srdP, srdOut = S(20, 4), S(24, 4)
    g.scmp('s_cmp_ge_u32', S(2), 336)
    g.branch('s_cbranch_scc1', 'reduce_end')
    g.raw("s_load_dwordx16 s[4:19], s[0:1], 0")
    g.salu('s_lshl_b32', S(40), S(2), 8)
    g.valu('v_add_u32', V(1), S(40), V(0))
    g.valu('v_lshlrev_b32', V(2), 4, V(1))
    g.valu('v_lshrrev_b32', V(4), 6, V(1))
    g.salu('s_mov_b32', S(41), hex((2**32 + 27) // 28))
    g.valu('v_mul_hi_u32', V(5), V(4), S(41))
    g.valu('v_mul_u32_u24', V(6), 28, V(5))
    g.valu('v_sub_u32', V(4), V(4), V(6))
    g.valu('v_and_b32', V(6), 31, V(1))
    g.valu('v_lshl_add_u32', V(5), V(5), 5, V(6))
    g.valu('v_mul_u32_u24', V(3), 896, V(5))
    g.valu('v_lshl_add_u32', V(3), V(4), 5, V(3))
    g.valu('v_bfe_u32', V(5), V(1), 5, 1)
    g.valu('v_lshl_add_u32', V(3), V(5), 4, V(3))
    g.wait(lgkm=0)
    make_srd(g, srdP, P(7), 16 * 1536 * 448 * 2)
    make_srd(g, srdOut, P(5), 1536 * 448 * 2)
    for h in range(16):
        g.salu('s_mov_b32', S(44 + h), h * 1536 * 448 * 2)
    for h in range(16):
        g.buf_load('buffer_load_dwordx4', V(16 + 4 * h, 4), V(2), srdP, S(44 + h), flags=os.environ.get('RFLAGS', ''))
    acc = V(8, 8)
    for h in range(16):
        for i in range(4):
            src = V(16 + 4 * h + i)
            if h == 0:
                g.valu('v_lshlrev_b32', acc[2 * i], 16, src)
                g.valu('v_and_b32', acc[2 * i + 1], '0xffff0000', src)
            else:
                g.valu('v_lshlrev_b32', V(80), 16, src)
                g.valu('v_and_b32', V(81), '0xffff0000', src)
                g.valu('v_add_f32', acc[2 * i], acc[2 * i], V(80))
                g.valu('v_add_f32', acc[2 * i + 1], acc[2 * i + 1], V(81))
    for i in range(4):
        g.valu('v_cvt_pk_bf16_f32', V(84 + i), acc[2 * i], acc[2 * i + 1])
    g.buf_store('buffer_store_dwordx4', V(84, 4), V(3), srdOut, 0)
    g.label('reduce_end')
    g.raw('s_endpgm')
    return kd(name, 88, 88)


def main():
    out = HEADER
    out += "; @launch kernel=attn_kernel grid=(256,1,1) block=(256,1,1) lds=163840\n"
    out += "; @launch kernel=reduce_kernel grid=(336,1,1) block=(256,1,1) lds=0\n"
    out += '.amdgcn_target "amdgcn-amd-amdhsa--gfx950"\n.text\n'
    g = Gen(); k1 = gen_attn(g); out += g.text() + k1
    g = Gen(); g.nlabel = 1000; k2 = gen_reduce(g); out += g.text() + k2
    open(os.environ.get('OUT', 'standalone__mha_block_cached__near_ridge.s'), 'w').write(out)

if __name__ == "__main__":
    main()
```

```python
import sys, math
sys.path.insert(0, 'gen')
from asmgen import *

HEADER = """; Kernarg layout for this problem (64 bytes, ptrs only, base s[0:1]):
"""

def kd(name, vgpr, acc_off, sgpr=102):
    return f""".section .rodata,"a"
.p2align 6
.amdhsa_kernel {name}
  .amdhsa_next_free_vgpr {vgpr}
  .amdhsa_next_free_sgpr {sgpr}
  .amdhsa_accum_offset {acc_off}
  .amdhsa_group_segment_fixed_size 0
  .amdhsa_kernarg_size 64
  .amdhsa_user_sgpr_count 2
  .amdhsa_user_sgpr_kernarg_segment_ptr 1
  .amdhsa_system_sgpr_workgroup_id_x 1
.end_amdhsa_kernel
.text
"""

def kernel_head(g, name):
    g.lines.append(f".globl {name}")
    g.lines.append(".p2align 8")
    g.lines.append(f".type {name},@function")
    g.lines.append(f"{name}:")
    g.fence()

def make_srd(g, srd, ptr, nbytes, add_lo=None):
    if add_lo is None:
        g.salu('s_mov_b32', srd[0], ptr[0])
        g.salu('s_mov_b32', srd[1], ptr[1])
    else:
        g.salu('s_add_u32', srd[0], ptr[0], add_lo)
        g.salu('s_addc_u32', srd[1], ptr[1], 0)
    g.salu('s_mov_b32', srd[2], hex(nbytes))
    g.salu('s_mov_b32', srd[3], '0x00020000')

def perm_chunk_valu(g, dst, cm, tmp):
    g.valu('v_and_b32', dst, 4, cm)
    g.valu('v_and_b32', tmp, 1, cm)
    g.valu('v_lshlrev_b32', tmp, 1, tmp)
    g.valu('v_or_b32', dst, dst, tmp)
    g.valu('v_lshrrev_b32', tmp, 1, cm)
    g.valu('v_and_b32', tmp, 1, tmp)
    g.valu('v_or_b32', dst, dst, tmp)

import os
EXP = os.environ.get('EXP', '')
WFLAGS = os.environ.get('WFLAGS', '')
XFLAGS = os.environ.get('XFLAGS', '')
NT = 32
NW = 14
KRING = 0
NKS = 6
VRING = 98304
TILE = 16384
WOT = 28672
WO_SLOT = [2 * WOT, 0, WOT, VRING, VRING + WOT, 2 * WOT, 0, WOT]

def interleave(g, mf, fill):
    n = len(mf)
    k = 0
    for i, m in enumerate(mf):
        m()
        upto = (len(fill) * (i + 1)) // n
        while k < upto:
            fill[k]()
            k += 1

def gen_attn(g):
    import struct
    name = 'attn_kernel'
    kernel_head(g, name)
    P = lambda i: S(4 + 2 * i, 2)
    srdK, srdV, srdW, srdX, srdO = S(20, 4), S(24, 4), S(28, 4), S(32, 4), S(36, 4)
    s_bh, s_half, s_b, s_h, s_wave = S(40), S(41), S(42), S(43), S(44)
    st0, st1 = S(45), S(46)
    s_c = S(50)
    s_rot = S(58)
    Lend = 'attn_end'
    g.scmp('s_cmp_ge_u32', S(2), 256)
    g.branch('s_cbranch_scc1', Lend)
    g.raw("s_load_dwordx16 s[4:19], s[0:1], 0")
    g.salu('s_lshr_b32', st0, S(2), 4)
    g.salu('s_lshl_b32', st0, st0, 3)
    g.salu('s_and_b32', st1, S(2), 7)
    g.salu('s_add_u32', s_bh, st0, st1)
    g.salu('s_lshr_b32', st0, S(2), 3)
    g.salu('s_and_b32', s_half, st0, 1)
    g.salu('s_lshr_b32', s_b, s_bh, 4)
    g.salu('s_and_b32', s_h, s_bh, 15)
    g.valu('v_lshrrev_b32', V(1), 6, V(0))
    g.readfirstlane(s_wave, V(1))
    cval = struct.unpack('<I', struct.pack('<f', math.log2(math.e) / 16.0))[0]
    g.salu('s_mov_b32', s_c, hex(cval))
    g.salu('s_mul_i32', s_rot, s_bh, 11)
    g.salu('s_and_b32', s_rot, s_rot, 31)
    g.salu('s_lshl_b32', s_rot, s_rot, 14)
    s_wrot = S(65)
    g.salu('s_lshl_b32', s_wrot, s_b, 1)
    g.salu('s_add_u32', s_wrot, s_wrot, s_half)
    g.scmp('s_cmp_ge_u32', s_wrot, 14)
    g.ins(f"s_cselect_b32 {st0}, 14, 0", 'salu', writes=[st0])
    g.salu('s_sub_u32', s_wrot, s_wrot, st0)
    def wtile_idx(dst, pos):
        g.salu('s_add_u32', dst, s_wrot, pos)
        g.scmp('s_cmp_ge_u32', dst, 14)
        g.ins(f"s_cselect_b32 {st1}, 14, 0", 'salu', writes=[st1])
        g.salu('s_sub_u32', dst, dst, st1)
    g.wait(lgkm=0)
    g.salu('s_lshl_b32', st0, s_bh, 19)
    make_srd(g, srdK, P(1), 524288, st0)
    make_srd(g, srdV, P(2), 524288, st0)
    make_srd(g, srdW, P(3), 448 * 4096 * 2)
    make_srd(g, srdX, P(0), 8 * 192 * 448 * 2)
    make_srd(g, srdO, P(7), 16 * 1536 * 448 * 2)
    srdWo = S(76, 4)
    g.salu('s_mul_i32', st0, s_h, 256 * 896)
    make_srd(g, srdWo, P(4), 256 * 896, st0)
    DIAG = os.environ.get('DIAG')
    srdD = S(68, 4)
    if DIAG:
        make_srd(g, srdD, P(6), 256)
    def stamp(idx):
        if not DIAG: return
        lab = g.newlabel('st')
        g.scmp('s_cmp_lg_u32', S(2), int(DIAG))
        g.branch('s_cbranch_scc1', lab)
        g.raw("s_memrealtime s[72:73]" if idx >= 10 else "s_memtime s[72:73]")
        g.raw("s_waitcnt lgkmcnt(0)")
        g.raw("v_mov_b32 v126, s72")
        g.raw(f"s_lshl_b32 s74, s44, 6")
        g.raw(f"s_add_u32 s74, s74, {idx*4}")
        g.raw("v_mov_b32 v127, s74")
        g.raw("buffer_store_dword v126, v127, s[68:71], 0 offen")
        g.raw("s_waitcnt vmcnt(0)") if False else None
        g.lines.append(f"{lab}:")
    vl = V(1)
    g.valu('v_and_b32', vl, 63, V(0))
    vhi, vlo31 = V(2), V(3)
    stamp(0)
    stamp(10)
    g.valu('v_lshrrev_b32', vhi, 5, vl)
    g.valu('v_and_b32', vlo31, 31, vl)
    kv = [V(32 + i) for i in range(8)]
    t0, t1, t2 = V(24), V(25), V(26)
    for i in range(8):
        g.valu('v_add_u32', t0, 2 * i, vhi)
        g.valu('v_xor_b32', t0, t0, vlo31)
        g.valu('v_lshlrev_b32', t0, 4, t0)
        g.valu('v_lshl_add_u32', kv[i], vhi, 9, t0)

    vv = [V(40 + i) for i in range(2)]
    wv = [V(42 + i) for i in range(2)]
    for i in range(2):
        g.valu('v_add_u32', t0, 2 * i, vhi)
        g.valu('v_lshlrev_b32', t0, 2, t0)
        g.valu('v_xor_b32', t0, t0, vlo31)
        g.valu('v_lshlrev_b32', t0, 4, t0)
        g.valu('v_lshl_add_u32', vv[i], vhi, 9, t0)
        g.valu('v_lshl_add_u32', wv[i], vhi, 13, t0)

    g.salu('s_mov_b32', S(67), 0)
    g.salu('s_mov_b32', S(83), 0)
    g.salu('s_mov_b32', S(84), VRING)
    g.salu('s_lshl_b32', S(85), s_h, 9)
    def issue_wq(tag=None):
        wtile_idx(S(86), S(67))
        g.salu('s_add_u32', S(67), S(67), 1)
        g.salu('s_lshl_b32', S(86), S(86), 18)
        g.salu('s_add_u32', S(86), S(86), S(85))
        g.salu('s_add_u32', S(87), S(83), S(84))
        for i in range(16):
            g.salu('s_add_u32', 'm0', S(87), i * 1024)
            g.buf_dma(wv[i & 1], srdW, S(86), offset=0, flags=WFLAGS, tag=tag)
            if i < 15:
                g.salu('s_add_u32', S(86), S(86), 16384)
        g.salu('s_add_u32', S(83), S(83), TILE)
        g.salu('s_and_b32', S(83), S(83), 0xFFFF)

    def issue_lin(srd, voffs, soff, slds):
        for q in range(4):
            g.salu('s_add_u32', 'm0', slds, q * 4096)
            g.salu('s_add_u32', st0, soff, q * 4096)
            for i4 in range(4):
                i = q * 4 + i4
                g.buf_dma(voffs[i % len(voffs)], srd, st0, offset=i4 * 1024, flags=os.environ.get('KVFLAGS', ' nt'))

    g.scmp('s_cmp_eq_u32', s_wave, 3)
    g.branch('s_cbranch_scc1', 'attn_loader')

    g.salu('s_mul_i32', st0, s_half, 96)
    g.salu('s_lshl_b32', st1, s_wave, 5)
    g.salu('s_add_u32', st0, st0, st1)
    g.salu('s_mul_i32', st1, s_b, 192)
    g.salu('s_add_u32', st0, st0, st1)
    vrow = V(4)
    g.valu('v_add_u32', vrow, st0, vlo31)
    vx = V(5)
    g.salu('s_mov_b32', st1, 896)
    g.valu('v_mul_lo_u32', vx, vrow, st1)
    g.valu('v_lshl_add_u32', vx, vhi, 4, vx)
    xf = [A(128 + 4 * i, 4) for i in range(28)]
    def xloads(lo, hi):
        for t in range(lo, hi):
            wtile_idx(S(66), t)
            g.salu('s_lshl_b32', S(66), S(66), 6)
            for s_ in range(2):
                g.buf_load('buffer_load_dwordx4', xf[2 * t + s_], vx, srdX, S(66), offset=32 * s_, flags=XFLAGS)
    xloads(0, 3)
    vo = V(6)
    g.salu('s_lshl_b32', st1, s_h, 9)
    g.valu('v_lshlrev_b32', vo, 13, vrow)
    g.valu('v_add_u32', vo, st1, vo)
    g.valu('v_lshl_add_u32', vo, vhi, 4, vo)
    kaddr = [V(8 + i) for i in range(8)]
    g.valu('v_and_b32', t1, 15, vlo31)
    for jj in range(8):
        g.valu('v_add_u32', t0, 2 * jj, vhi)
        g.valu('v_xor_b32', t0, t0, t1)
        g.valu('v_lshlrev_b32', t0, 4, t0)
        g.valu('v_lshl_add_u32', kaddr[jj], vlo31, 9, t0)
    vaddr = [V(16 + i) for i in range(4)]
    waddr = [V(20 + i) for i in range(4)]
    waddr2 = [V(44 + i) for i in range(4)]
    waddr3 = [V(48 + i) for i in range(4)]
    vrr, vcm, vdch = V(27), V(28), V(29)
    g.valu('v_lshrrev_b32', vrr, 2, vl)
    g.valu('v_and_b32', vrr, 3, vrr)
    g.valu('v_lshrrev_b32', t0, 4, vl)
    g.valu('v_and_b32', t0, 1, t0)
    g.valu('v_and_b32', vcm, 3, vl)
    g.valu('v_lshl_add_u32', vcm, t0, 2, vcm)
    perm_chunk_valu(g, vdch, vcm, t0)
    for tt in range(4):
        g.valu('v_xor_b32', t0, tt, vrr)
        g.valu('v_lshlrev_b32', t0, 6, t0)
        g.valu('v_lshl_add_u32', t0, vdch, 3, t0)
        g.valu('v_add_u32', t0, VRING, t0)
        g.valu('v_lshl_add_u32', t1, vhi, 2, vrr)
        g.valu('v_lshl_add_u32', vaddr[tt], t1, 9, t0)
        g.valu('v_lshl_add_u32', t1, vhi, 3, vrr)
        g.valu('v_lshl_add_u32', waddr[tt], t1, 9, t0)
        g.valu('v_subrev_u32', waddr[tt], VRING, waddr[tt])
        g.valu('v_add_u32', waddr2[tt], 65536, waddr[tt])
        g.valu('v_add_u32', waddr3[tt], 131072, waddr[tt])

    O = [V(128 + 16 * T, 16) for T in range(8)]
    KF = [A(4 * j, 4) for j in range(16)]
    def VFb(b):
        return [[A(64 * b + 8 * T + 4 * s, 4) for s in range(2)] for T in range(8)]
    VF = VFb(1)
    QF = [A(128 + 4 * j, 4) for j in range(16)]
    Sb = [V(32, 16), V(48, 16)]
    Pf = [V(64, 4), V(68, 4)]
    vm, vlsum, vtmax, vtm2 = V(72), V(73), V(74), V(75)

    def v_reads(addrs, slot, rowstep, VFx):
        out = []
        for T in range(8):
            for s in range(2):
                for r in range(2):
                    off = slot * TILE + (16 * s + rowstep * r) * 512 + (T >> 2) * 256
                    out.append(lambda T=T, s=s, r=r, off=off: g.ds_read(
                        'ds_read_b64_tr_b16', VFx[T][s].sub(2 * r, 2), addrs[T & 3], off))
        return out

    def k_reads(extra=0):
        return [lambda j=j: g.ds_read('ds_read_b128', KF[j], kaddr[j & 7], extra + (j >> 3) * 256)
                for j in range(16)]
    s_kslot, s_kd = S(62), S(63)
    def k_advance():
        ops = []
        ops.append(lambda: g.salu('s_add_u32', s_kslot, s_kslot, 1))
        ops.append(lambda: g.scmp('s_cmp_eq_u32', s_kslot, NKS))
        ops.append(lambda: g.ins(f"s_cselect_b32 {s_kd}, s64, {TILE}", 'salu', writes=[s_kd]))
        ops.append(lambda: g.ins(f"s_cselect_b32 {s_kslot}, 0, {s_kslot}", 'salu', reads=[s_kslot], writes=[s_kslot]))
        for jj in range(8):
            ops.append(lambda jj=jj: g.valu('v_add_u32', kaddr[jj], s_kd, kaddr[jj]))
        return ops
    g.salu('s_mov_b32', s_kslot, 0)
    g.salu('s_mov_b32', S(64), hex((-(NKS-1)*TILE) & 0xffffffff))

    def wslot(i):
        return 6 + (i & 3)
    def w_reads(i):
        sl = wslot(i)
        return v_reads([waddr, waddr2, waddr3][sl >> 2], sl & 3, 4, VFb(i & 1))
    g.barrier()
    for f in w_reads(0): f()
    for t in range(NW):
        if t > 0:
            g.barrier()
        if t + 3 < NW:
            xloads(t + 3, t + 4)
        mf = []
        for T in range(8):
            for s in range(2):
                first = (t == 0 and s == 0)
                mf.append(lambda T=T, s=s, first=first, t=t: g.mfma32(O[T], VFb(t & 1)[T][s], xf[2 * t + s], 0 if first else O[T]))
        fill = w_reads(t + 1) if t + 1 < NW else []
        interleave(g, mf, fill)
        g.wait(lgkm=0)
    for T in range(8):
        for s in range(2):
            for i in range(4):
                g.valu('v_cvt_pk_bf16_f32', V(76 + i), O[T][8 * s + 2 * i], O[T][8 * s + 2 * i + 1])
            for i in range(4):
                g.accw(QF[2 * T + s][i], V(76 + i))
    for T in range(8):
        for i in range(16):
            g.valu('v_mov_b32', O[T][i], 0)
    g.valu('v_mov_b32', vm, '0xf149f2ca')
    g.valu('v_mov_b32', vlsum, 0)

    def qk_mfmas(Sd):
        return [lambda j=j: g.mfma32(Sd, KF[j], QF[j], 0 if j == 0 else Sd) for j in range(16)]

    def max_ops(Sd):
        ops = []
        ops.append(lambda: g.valu('v_max3_f32', vtmax, Sd[0], Sd[1], Sd[2]))
        for i in range(3, 15, 2):
            ops.append(lambda i=i: g.valu('v_max3_f32', vtmax, vtmax, Sd[i], Sd[i + 1]))
        ops.append(lambda: g.valu('v_max_f32', vtmax, vtmax, Sd[15]))
        ops.append(lambda: g.valu('v_mov_b32', vtm2, vtmax))
        ops.append(lambda: g.perm32swap(vtmax, vtm2))
        ops.append(lambda: g.valu('v_max_f32', vtmax, vtmax, vtm2))
        ops.append(lambda: g.valu('v_mul_f32', vtmax, s_c, vtmax))
        ops.append(lambda: g.valu('v_sub_f32', vtm2, vtmax, vm))
        ops.append(lambda: g.vcmp('v_cmp_lt_f32', 'vcc', '0x41000000', vtm2))
        return ops

    stamp(1)
    g.barrier()
    for f in k_reads(): f()
    for f in qk_mfmas(Sb[0]): f()
    for f in k_reads(TILE): f()
    for f in k_advance(): f()
    for f in k_advance(): f()
    for f in max_ops(Sb[0]): f()
    PRELOOP_HOOK = len(g.lines)

    rare_blocks = []
    def rescale_block():
        rare = g.newlabel('attn_rs')
        back = g.newlabel('attn_rsb')
        g.branch('s_cbranch_vccnz', rare)
        g.label(back)
        rare_blocks.append((rare, back))

    def emit_rare_blocks():
        for rare, back in rare_blocks:
            g.label(rare)
            g.nop(16)
            g.valu('v_max_f32', vtmax, vtmax, vm)
            g.valu('v_sub_f32', vtm2, vm, vtmax)
            g.valu('v_exp_f32', vtm2, vtm2)
            g.valu('v_mov_b32', vm, vtmax)
            g.valu('v_mul_f32', vlsum, vlsum, vtm2)
            for T in range(8):
                for i in range(16):
                    g.valu('v_mul_f32', O[T][i], O[T][i], vtm2)
            g.nop(4)
            g.branch('s_branch', back)

    def v_reads_s(slot, s_):
        out = []
        for T in range(8):
            for r in range(2):
                off = slot * TILE + (16 * s_ + 8 * r) * 512 + (T >> 2) * 256
                out.append(lambda T=T, r=r, off=off: g.ds_read(
                    'ds_read_b64_tr_b16', VF[T][s_].sub(2 * r, 2), vaddr[T & 3], off))
        return out

    def softmax_ops(cur, lo, hi):
        ops = []
        for i in range(lo, hi + 2):
            if i < hi:
                ops.append(lambda i=i: g.valu('v_fma_f32', cur[i], cur[i], s_c, f"-{vm}"))
            if lo <= i - 1 < hi:
                ops.append(lambda i=i: g.valu('v_exp_f32', cur[i - 1], cur[i - 1]))
            if lo <= i - 2 < hi:
                ops.append(lambda i=i: g.valu('v_add_f32', vlsum, vlsum, cur[i - 2]))
                if (i - 2) & 1:
                    j = (i - 2) >> 1
                    ops.append(lambda j=j: g.valu('v_cvt_pk_bf16_f32', Pf[j >> 2][j & 3], cur[2 * j], cur[2 * j + 1]))
        return ops

    def mix(a_, b_):
        out = []
        na, nb = len(a_), len(b_)
        ia = ib = 0
        while ia < na or ib < nb:
            if ib >= nb or (ia < na and ia * nb <= ib * na):
                out.append(a_[ia]); ia += 1
            else:
                out.append(b_[ib]); ib += 1
        return out

    def iteration(t_mod4, do_qk=True, do_kread=True, do_vnext=True):
        cur, nxt = Sb[t_mod4 & 1], Sb[(t_mod4 + 1) & 1]
        g.wait(vm=0)
        if 'nobar' not in EXP: g.barrier()
        if 'nocomp' in EXP: return
        vs1 = v_reads_s((14 + t_mod4) % 4, 1)
        vn0 = v_reads_s((15 + t_mod4) % 4, 0) if do_vnext else []
        kr = k_reads() if do_kread else []
        qk = qk_mfmas(nxt) if do_qk else []
        pv = [[(lambda T=T, s_=s_: g.mfma32(O[T], VF[T][s_], Pf[s_], O[T])) for T in range(8)] for s_ in range(2)]
        if 'nolds' in EXP:
            vs1 = []; vn0 = []; kr = []
        if 'nosm' in EXP:
            softmax_ops_ = lambda *a: []
        else:
            softmax_ops_ = softmax_ops
        fa = mix(softmax_ops_(cur, 0, 8), vs1[:4])
        fb = mix(softmax_ops_(cur, 8, 12), vs1[4:] + kr[:6])
        fc = mix(softmax_ops_(cur, 12, 16), kr[6:8] + vn0)
        fd = kr[8:] + (k_advance() if do_kread else [])
        if do_qk:
            fd = fd[:4] + max_ops(nxt) + fd[4:]
        if do_qk:
            interleave(g, qk[:8], fa)
        else:
            for f in fa: f()
        interleave(g, pv[0], fb)
        if do_qk:
            interleave(g, qk[8:], fc)
        else:
            for f in fc: f()
        interleave(g, pv[1], fd)
        if do_qk:
            rescale_block()
        g.wait(lgkm=0)

    for f in v_reads_s(14 % 4, 0): f()
    rescale_block()
    g.wait(lgkm=0)
    s_cnt = S(51)
    g.salu('s_mov_b32', s_cnt, 0)
    g.label('attn_loop')
    for u in range(4):
        iteration(u)
    g.salu('s_add_u32', s_cnt, s_cnt, 1)
    g.scmp('s_cmp_lt_u32', s_cnt, 7)
    g.branch('s_cbranch_scc1', 'attn_loop')
    g.fence()
    iteration(0)
    iteration(1)
    iteration(2, do_kread=False)
    iteration(3, do_qk=False, do_kread=False, do_vnext=False)
    stamp(3)
    g.nop(16)
    g.valu('v_mov_b32', vtm2, vlsum)
    g.perm32swap(vlsum, vtm2)
    g.valu('v_add_f32', vlsum, vlsum, vtm2)
    g.valu('v_rcp_f32', vlsum, vlsum)
    OF = QF
    for T in range(8):
        for i in range(16):
            g.valu('v_mul_f32', O[T][i], O[T][i], vlsum)
        for s_ in range(2):
            for i in range(4):
                g.valu('v_cvt_pk_bf16_f32', V(76 + i), O[T][8 * s_ + 2 * i], O[T][8 * s_ + 2 * i + 1])
            for i in range(4):
                g.accw(OF[2 * T + s_][i], V(76 + i))
    wbe, wbo, wae, wao = V(8), V(9), V(10), V(11)
    g.valu('v_lshl_add_u32', t0, vhi, 3, vrr)
    g.salu('s_mov_b32', st1, 896)
    g.valu('v_mul_lo_u32', t0, t0, st1)
    g.valu('v_lshl_add_u32', t0, vdch, 3, t0)
    g.valu('v_lshrrev_b32', t1, 1, vrr)
    g.valu('v_lshlrev_b32', t1, 6, t1)
    g.valu('v_add_u32', wbe, t0, t1)
    g.valu('v_sub_u32', wbo, t0, t1)
    vpo = V(12)
    g.salu('s_mul_i32', st0, s_h, 48)
    g.salu('s_mul_i32', st1, s_b, 6)
    g.salu('s_add_u32', st0, st0, st1)
    g.salu('s_mul_i32', st1, s_half, 3)
    g.salu('s_add_u32', st0, st0, st1)
    g.salu('s_add_u32', st0, st0, s_wave)
    g.salu('s_mul_i32', st0, st0, 28672)
    g.valu('v_lshlrev_b32', vpo, 4, vl)
    g.valu('v_add_u32', vpo, st0, vpo)
    ACC = [V(32 + 16 * nt, 16) for nt in range(14)]
    def WFb(bf):
        return [[A(64 * bf + 8 * q + 4 * s_, 4) for s_ in range(2)] for q in range(7)]
    wadr = [(V(10), V(11)), (V(13), V(14))]
    def wo_reads(half, u):
        out = []
        we, wo_ = wadr[u & 1]
        for q in range(7):
            nt = 7 * half + q
            for s_ in range(2):
                for r in range(2):
                    out.append(lambda q=q, nt=nt, s_=s_, r=r: g.ds_read('ds_read_b64_tr_b16', WFb(half)[q][s_].sub(2 * r, 2),
                               wo_ if nt & 1 else we, (16 * s_ + 4 * r) * 896 + nt * 64))
        return out
    def wo_mfmas(half, u):
        out = []
        for s_ in range(2):
            for q in range(7):
                nt = 7 * half + q
                first = (u == 0 and s_ == 0)
                out.append(lambda q=q, nt=nt, s_=s_, first=first: g.mfma32(ACC[nt], WFb(half)[q][s_], OF[2 * u + s_], 0 if first else ACC[nt]))
        return out
    def wo_addr(u):
        g.valu('v_add_u32', wadr[u & 1][0], WO_SLOT[u], wbe)
        g.valu('v_add_u32', wadr[u & 1][1], WO_SLOT[u], wbo)
    wo_addr(0)
    for u in range(8):
        g.barrier()
        if u == 0:
            for f in wo_reads(0, 0): f()
        if u + 1 < 8:
            wo_addr(u + 1)
        interleave(g, wo_mfmas(0, u), wo_reads(1, u))
        interleave(g, wo_mfmas(1, u), wo_reads(0, u + 1) if u + 1 < 8 else [])
        g.wait(lgkm=0)
    stamp(2)
    g.nop(12)
    for nt in range(14):
        if nt % 2 == 0:
            g.salu('s_mov_b32', st0, (nt // 2) * 4096)
        for q in range(2):
            dst = V(16 + 4 * ((2 * nt + q) & 1), 4)
            for i in range(4):
                g.valu('v_cvt_pk_bf16_f32', dst[i], ACC[nt][8 * q + 2 * i], ACC[nt][8 * q + 2 * i + 1])
            g.buf_store('buffer_store_dwordx4', dst, vpo, srdO, st0, offset=((nt & 1) * 2 + q) * 1024, flags=os.environ.get('SFLAGS', ''))
    if DIAG:
        g.wait(vm=0)
    stamp(4)
    stamp(11)
    g.raw('s_endpgm')
    emit_rare_blocks()

    g.label('attn_loader')
    ov = [V(48 + i) for i in range(7)]
    def issue_wo(u):
        for i in range(28):
            g.salu('s_mov_b32', 'm0', WO_SLOT[u] + i * 1024)
            g.salu('s_mov_b32', st0, u * WOT + (i // 7) * 7168)
            g.buf_dma(ov[i % 7], srdWo, st0, offset=0)
    sKoff, sKlds, sVoff, sVlds, sWoff = S(52), S(53), S(54), S(55), S(56)
    g.salu('s_mov_b32', sKoff, s_rot)
    g.salu('s_mov_b32', sKlds, KRING)
    g.salu('s_mov_b32', sVoff, s_rot)
    g.salu('s_mov_b32', sVlds, 0)
    s_tl = S(59)

    def issue_k():
        issue_lin(srdK, kv, sKoff, sKlds)
        if 'l2res' not in EXP:
            g.salu('s_add_u32', sKoff, sKoff, TILE)
        g.salu('s_and_b32', sKoff, sKoff, 0x7FFFF)
        g.salu('s_add_u32', sKlds, sKlds, TILE)
        g.scmp('s_cmp_eq_u32', sKlds, NKS * TILE)
        g.ins(f"s_cselect_b32 {sKlds}, 0, {sKlds}", 'salu', reads=[sKlds], writes=[sKlds])

    def issue_v():
        g.salu('s_add_u32', s_tl, sVlds, VRING)
        issue_lin(srdV, vv, sVoff, s_tl)
        if 'l2res' not in EXP:
            g.salu('s_add_u32', sVoff, sVoff, TILE)
        g.salu('s_and_b32', sVoff, sVoff, 0x7FFFF)
        g.salu('s_add_u32', sVlds, sVlds, TILE)
        g.salu('s_and_b32', sVlds, sVlds, 0xFFFF)

    def issue_w(idx):
        issue_wq()
        g.salu('s_add_u32', sVlds, sVlds, TILE)
        g.salu('s_and_b32', sVlds, sVlds, 0xFFFF)

    def need(x):
        k, i = x
        if k == 'W': return max(i - 1, 0)
        if k == 'V': return 14 + i
        if k == 'O': return 47 + max(i - 1, 0)
        return 14 if i < 2 else 13 + i
    def consumed(x):
        if x[0] == 'O': return 47 + x[1]
        return need(x) + 1 if x[0] == 'V' else need(x)
    def size(x): return 28 if x[0] == 'O' else 16
    items = [('W', j) for j in range(NW)] + [('V', t) for t in range(NT)] + [('K', k) for k in range(NT)] + [('O', u) for u in range(8)]
    seq = sorted(items, key=lambda x: (need(x), {'W': 0, 'K': 1, 'V': 2, 'O': 3}[x[0]], x[1]))
    def slot_prev(x):
        k, i = x
        if k == 'O':
            if i >= 5: return [('O', i - 5)]
            return {0: [('K', 27), ('K', 28), ('K', 29)], 1: [('K', 30), ('K', 31)], 2: [('K', 31), ('K', 26), ('K', 27)],
                    3: [('V', 30), ('V', 31)], 4: [('V', 31), ('V', 28), ('V', 29)]}[i]
        if k == 'K':
            return [('K', i - NKS)] if i >= NKS else []
        u = i if k == 'W' else 14 + i
        u -= 4
        if u < 0: return []
        return [('W', u) if u < 14 else ('V', u - 14)]
    NEV = 15 + NT + 8
    def qidx(j):
        return max(i for i, x in enumerate(seq) if need(x) <= j)
    def span(lo, hi):
        return sum(size(x) for x in seq[lo:hi])
    sched = []
    ip = 0
    pre = []
    def can_issue(ipx, after_ev):
        x = seq[ipx]
        if x[0] == 'W' and x[1] >= 4 and after_ev < max(x[1] - 4, 1):
            return False
        for sp in slot_prev(x):
            if consumed(sp) + 1 > after_ev:
                return False
        nxt_ev = after_ev + 1
        if nxt_ev < NEV and span(qidx(nxt_ev) + 1, ipx + 1) > 60:
            return False
        return True
    while ip < len(seq) and can_issue(ip, -1):
        pre.append(seq[ip]); ip += 1
    for j in range(NEV):
        n = span(qidx(j) + 1, ip)
        assert 0 <= n <= 63
        lst = []
        while ip < len(seq) and can_issue(ip, j):
            lst.append(seq[ip]); ip += 1
        sched.append((n, lst))
    assert ip == len(seq)
    if os.environ.get('SHOWSCHED'):
        print(pre); [print(j, x) for j, x in enumerate(sched)]
    def do_issue(x):
        if 'nodma' in EXP: return
        if x[0] == 'W': issue_w(x[1])
        elif x[0] == 'K': issue_k()
        elif x[0] == 'O': issue_wo(x[1])
        else: issue_v()
    stamp(1)
    for i_, x in enumerate(pre):
        do_issue(x)
        stamp(4 + i_)
    stamp(2)
    g.salu('s_mov_b32', st0, hex((2**32 + 55) // 56))
    g.salu('s_mov_b32', st1, 56)
    for i in range(7):
        g.valu('v_add_u32', t0, 64 * i, vl)
        g.valu('v_mul_hi_u32', t1, t0, st0)
        g.valu('v_mul_lo_u32', t2, t1, st1)
        g.valu('v_sub_u32', t0, t0, t2)
        g.valu('v_lshrrev_b32', t2, 1, t1)
        g.valu('v_and_b32', t2, 1, t2)
        g.valu('v_lshlrev_b32', t2, 2, t2)
        g.valu('v_xor_b32', t0, t0, t2)
        g.valu('v_lshlrev_b32', t0, 4, t0)
        g.valu('v_mul_u32_u24', t1, 896, t1)
        g.valu('v_add_u32', ov[i], t0, t1)
    if DIAG:
        g.wait(vm=32)
        stamp(3)
    j = 0
    s_lc = S(57)
    while j < NEV:
        n, lst = sched[j]
        kinds = [x[0] for x in lst]
        run = 1
        while j + run < NEV and sched[j + run][0] == n and [x[0] for x in sched[j + run][1]] == kinds and 'O' not in kinds:
            run += 1
        if run >= 4:
            lab = g.newlabel('attn_ldloop')
            g.salu('s_mov_b32', s_lc, 0)
            g.label(lab)
            g.wait(vm=n)
            if not ('nobar' in EXP and 15 <= j <= 46): g.barrier()
            for x in lst: do_issue(x)
            g.salu('s_add_u32', s_lc, s_lc, 1)
            g.scmp('s_cmp_lt_u32', s_lc, run)
            g.branch('s_cbranch_scc1', lab)
            g.fence()
            j += run
        else:
            g.wait(vm=n)
            if not ('nobar' in EXP and 15 <= j <= 46): g.barrier()
            for x in lst: do_issue(x)
            j += 1
    g.label(Lend)
    g.raw('s_endpgm')
    return kd(name, 512, 256)


def gen_reduce(g):
    name = 'reduce_kernel'
    kernel_head(g, name)
    P = lambda i: S(4 + 2 * i, 2)
    srdP, srdOut = S(20, 4), S(24, 4)
    g.scmp('s_cmp_ge_u32', S(2), 336)
    g.branch('s_cbranch_scc1', 'reduce_end')
    g.raw("s_load_dwordx16 s[4:19], s[0:1], 0")
    g.salu('s_lshl_b32', S(40), S(2), 8)
    g.valu('v_add_u32', V(1), S(40), V(0))
    g.valu('v_lshlrev_b32', V(2), 4, V(1))
    g.valu('v_lshrrev_b32', V(4), 6, V(1))
    g.salu('s_mov_b32', S(41), hex((2**32 + 27) // 28))
    g.valu('v_mul_hi_u32', V(5), V(4), S(41))
    g.valu('v_mul_u32_u24', V(6), 28, V(5))
    g.valu('v_sub_u32', V(4), V(4), V(6))
    g.valu('v_and_b32', V(6), 31, V(1))
    g.valu('v_lshl_add_u32', V(5), V(5), 5, V(6))
    g.valu('v_mul_u32_u24', V(3), 896, V(5))
    g.valu('v_lshl_add_u32', V(3), V(4), 5, V(3))
    g.valu('v_bfe_u32', V(5), V(1), 5, 1)
    g.valu('v_lshl_add_u32', V(3), V(5), 4, V(3))
    g.wait(lgkm=0)
    make_srd(g, srdP, P(7), 16 * 1536 * 448 * 2)
    make_srd(g, srdOut, P(5), 1536 * 448 * 2)
    for h in range(16):
        g.salu('s_mov_b32', S(44 + h), h * 1536 * 448 * 2)
    for h in range(16):
        g.buf_load('buffer_load_dwordx4', V(16 + 4 * h, 4), V(2), srdP, S(44 + h), flags=os.environ.get('RFLAGS', ''))
    acc = V(8, 8)
    for h in range(16):
        for i in range(4):
            src = V(16 + 4 * h + i)
            if h == 0:
                g.valu('v_lshlrev_b32', acc[2 * i], 16, src)
                g.valu('v_and_b32', acc[2 * i + 1], '0xffff0000', src)
            else:
                g.valu('v_lshlrev_b32', V(80), 16, src)
                g.valu('v_and_b32', V(81), '0xffff0000', src)
                g.valu('v_add_f32', acc[2 * i], acc[2 * i], V(80))
                g.valu('v_add_f32', acc[2 * i + 1], acc[2 * i + 1], V(81))
    for i in range(4):
        g.valu('v_cvt_pk_bf16_f32', V(84 + i), acc[2 * i], acc[2 * i + 1])
    g.buf_store('buffer_store_dwordx4', V(84, 4), V(3), srdOut, 0)
    g.label('reduce_end')
    g.raw('s_endpgm')
    return kd(name, 88, 88)


def main():
    out = HEADER
    out += "; @launch kernel=attn_kernel grid=(256,1,1) block=(256,1,1) lds=163840\n"
    out += "; @launch kernel=reduce_kernel grid=(336,1,1) block=(256,1,1) lds=0\n"
    out += '.amdgcn_target "amdgcn-amd-amdhsa--gfx950"\n.text\n'
    g = Gen(); k1 = gen_attn(g); out += g.text() + k1
    g = Gen(); g.nlabel = 1000; k2 = gen_reduce(g); out += g.text() + k2
    open(os.environ.get('OUT', 'standalone__mha_block_cached__near_ridge.s'), 'w').write(out)

if __name__ == "__main__":
    main()
```
